```python
import torch

def _softmax(x, axis=-1):
    return torch.softmax(x, dim=axis)
def _gelu(x):
    return torch.nn.functional.gelu(x, approximate="tanh")
def _silu(x):
    return torch.nn.functional.silu(x)
def _sigmoid(x):
    return torch.sigmoid(x)
def _layernorm(x, axis=-1, eps=1e-5):
    m = x.mean(dim=axis, keepdim=True)
    v = x.var(dim=axis, keepdim=True, unbiased=False)
    return (x - m) / torch.sqrt(v + eps)
def _scatter_add(tgt, idx, src, axis=0):
    return tgt.clone().index_add_(axis, idx, src)
def _segment_sum(src, seg, n):
    out = torch.zeros((n,) + src.shape[1:], dtype=src.dtype)
    return out.index_add_(0, seg, src)
def _pad(x, pw):
    flat = tuple(v for pair in reversed(pw) for v in pair)
    return torch.nn.functional.pad(x, flat)

kernel_name = 'interleave_layers__linear_attn_block__dense_activation_silu__prompt'

def setup_inputs():

    _w = (lambda a: (lambda t: t.to(torch.bfloat16) if t.is_floating_point() else t)(torch.as_tensor(a)))
    def _A_setup():
        B, S, D = 1, 2048, 576
        return {
            "x": _w((lambda *s: torch.randn(*s, dtype=torch.bfloat16) * 0.05)(B, S, D)),
            "wqkv": _w((lambda *s: torch.randn(*s, dtype=torch.bfloat16) * 0.05)(D, 3 * D)),
            "wo": _w((lambda *s: torch.randn(*s, dtype=torch.bfloat16) * 0.05)(D, D)),
        }
    _A_in = _A_setup()

    def _B_setup():
        B, S, D, F = 1, 2048, 576, 4608
        return {
            "x": _w((lambda *s: torch.randn(*s, dtype=torch.bfloat16) * 0.05)(B, S, D)),
            "w1": _w((lambda *s: torch.randn(*s, dtype=torch.bfloat16) * 0.8)(D, F) * (D ** -0.5)),
            "w2": _w((lambda *s: torch.randn(*s, dtype=torch.bfloat16) * 0.8)(F, D) * (F ** -0.5)),
        }
    _B_in = _B_setup()

    return {
        "A_x": _A_in["x"],
        "A_wqkv": _A_in["wqkv"],
        "A_wo": _A_in["wo"],
        "B_x": _B_in["x"],
        "B_w1": _B_in["w1"],
        "B_w2": _B_in["w2"],
    }

def reference(A_x, A_wqkv, A_wo, B_x, B_w1, B_w2):
    def _A_ref(x, wqkv, wo):
        B, S, D = x.shape
        H = 32; Dh = D // H
        qkv = (lambda x, *d: x.permute(*d))((x @ wqkv).reshape(B, S, 3, H, Dh), 2, 0, 3, 1, 4)
        q, k, v = qkv[0], qkv[1], qkv[2]
        phi = lambda t: torch.where(t > 0, t + 1, torch.exp(t)) + 1e-6
        pq, pk = phi(q), phi(k)
        kv = torch.einsum("bhsd,bhse->bhde", pk, v)
        z = torch.einsum("bhsd->bhd", pk)
        num = torch.einsum("bhqd,bhde->bhqe", pq, kv)
        den = torch.einsum("bhqd,bhd->bhq", pq, z)[..., None] + 1e-6
        o = num / den
        return (lambda x, *d: x.permute(*d))(o, 0, 2, 1, 3).reshape(B, S, D) @ wo

    def _B_ref(x, w1, w2):
        h = torch.einsum("bsd,df->bsf", x, w1)
        h = _silu(h)
        out = torch.einsum("bsf,fd->bsd", h, w2)
        return out

    x = A_x
    x = x + _A_ref(_layernorm(x, axis=-1), A_wqkv, A_wo)
    x = x + _B_ref(_layernorm(x, axis=-1), B_w1, B_w2)
    x = x + _A_ref(_layernorm(x, axis=-1), A_wqkv, A_wo)
    x = x + _B_ref(_layernorm(x, axis=-1), B_w1, B_w2)
    return x
```

```python
import re

TRANS = ("v_exp_f32", "v_log_f32", "v_rcp_f32", "v_rsq_f32", "v_sqrt_f32", "v_sin_f32", "v_cos_f32")


def regs_of(tok):
    tok = tok.strip()
    if tok.startswith("-"):
        tok = tok[1:]
    m = re.fullmatch(r"abs\((.*)\)", tok)
    if m:
        tok = m.group(1)
    m = re.fullmatch(r"\|(.*)\|", tok)
    if m:
        tok = m.group(1)
    m = re.fullmatch(r"([vas])(\d+)", tok)
    if m:
        return [tok]
    m = re.fullmatch(r"([vas])\[(\d+):(\d+)\]", tok)
    if m:
        return [f"{m.group(1)}{i}" for i in range(int(m.group(2)), int(m.group(3)) + 1)]
    if tok == "vcc":
        return ["vcc"]
    if tok == "exec":
        return ["exec"]
    if tok == "m0":
        return ["m0"]
    return []


class Ins:
    def __init__(self, text):
        self.text = text
        t = text.split(";")[0].strip()
        self.label = t.endswith(":")
        self.directive = t.startswith(".")
        self.empty = t == ""
        self.mn = ""
        self.wr = []
        self.rd = []
        self.srcC = []
        self.srcAB = []
        self.store_data = []
        if self.label or self.directive or self.empty:
            return
        parts = t.split(None, 1)
        self.mn = parts[0]
        mn = re.sub(r"_e(32|64)$", "", self.mn)
        self.base = mn
        ops = []
        if len(parts) > 1:
            ops = [o.strip() for o in re.split(r",(?![^\[]*\])", parts[1])]
            if ops:
                last = ops[-1].split()
                ops[-1] = last[0] if last else ""
                self.mods = last[1:]
        self.ops = ops
        R = regs_of
        self.is_mfma = mn.startswith("v_mfma")
        self.is_valu = mn.startswith("v_") and not self.is_mfma
        self.is_trans = mn in TRANS
        self.is_dot = mn.startswith("v_dot")
        self.is_vmem = mn.startswith(("buffer_", "global_"))
        self.is_ds = mn.startswith("ds_")
        self.is_salu = mn.startswith("s_")
        self.is_permlane = mn.startswith("v_permlane")
        self.is_dpp = any(m.startswith(("row_", "quad_perm", "wave_")) for m in getattr(self, "mods", []))
        if self.is_mfma:
            self.wr = R(ops[0])
            self.srcAB = R(ops[1]) + R(ops[2])
            self.srcC = R(ops[3])
            self.rd = self.srcAB + self.srcC
            self.passes = 4 if "16x16" in mn else 8
        elif self.is_permlane:
            self.wr = R(ops[0]) + R(ops[1])
            self.rd = list(self.wr)
        elif self.is_valu:
            self.wr = R(ops[0])
            rest = ops[1:]
            if mn in ("v_add_co_u32", "v_addc_co_u32", "v_sub_co_u32"):
                self.wr += R(ops[1])
                rest = ops[2:]
            for o in rest:
                self.rd += R(o)
            if mn in ("v_fmac_f32", "v_dot2c_f32_bf16", "v_writelane_b32"):
                self.rd += R(ops[0])
            if self.is_dpp:
                self.rd += R(ops[0])
        elif self.is_vmem:
            lds = "lds" in getattr(self, "mods", [])
            if "load" in mn and not lds:
                self.wr = R(ops[0])
                for o in ops[1:]:
                    self.rd += R(o)
            else:
                for o in ops:
                    self.rd += R(o)
                if lds:
                    self.rd.append("m0")
                if "store" in mn and ("x3" in mn or "x4" in mn):
                    self.store_data = R(ops[0]) if mn.startswith("buffer") else R(ops[1])
                if "atomic" in mn and "sc0" in getattr(self, "mods", []) and mn.startswith("buffer"):
                    self.wr = R(ops[0])
        elif self.is_ds:
            if "read" in mn or "bpermute" in mn or "swizzle" in mn:
                self.wr = R(ops[0])
                for o in ops[1:]:
                    self.rd += R(o)
            else:
                for o in ops:
                    self.rd += R(o)
        elif self.is_salu:
            if mn.startswith(("s_cmp", "s_waitcnt", "s_nop", "s_barrier", "s_branch", "s_cbranch", "s_endpgm", "s_sleep", "s_setprio", "s_bitcmp")):
                for o in ops:
                    self.rd += R(o)
            else:
                if ops:
                    self.wr = R(ops[0])
                for o in ops[1:]:
                    self.rd += R(o)
                if "saveexec" in mn:
                    self.wr.append("exec")

    def states(self):
        if self.mn == "s_nop":
            return int(self.ops[0], 0) + 1
        return 1


def need_states(p, c):
    n = 0
    pw = set(p.wr)
    if p.is_mfma:
        if c.is_mfma:
            if pw & set(c.srcAB):
                n = max(n, 8 if p.passes == 4 else 12)
            if pw & set(c.srcC):
                if not (c.srcC == p.wr and c.passes == p.passes):
                    n = max(n, 6 if p.passes == 4 else 10)
            if pw & set(c.wr) and not (c.srcC == p.wr):
                n = max(n, 6 if p.passes == 4 else 10)
        elif c.is_valu or c.is_vmem or c.is_ds:
            if pw & (set(c.rd) | set(c.wr)):
                n = max(n, 8 if p.passes == 4 else 12)
            if c.is_valu and set(p.srcC) & set(c.wr):
                n = max(n, 3 if p.passes == 4 else 7)
    elif p.is_valu:
        vw = {r for r in pw if r[0] in "va" and r != "vcc"}
        sw = {r for r in pw if r[0] == "s" or r == "vcc"}
        if c.is_mfma and vw & set(c.rd):
            n = max(n, 3 if p.is_dot else 2)
        if c.is_mfma and "exec" in pw:
            n = max(n, 4)
        if c.is_valu:
            if p.is_trans and not c.is_trans and vw & set(c.rd):
                n = max(n, 1)
            if p.is_dot and vw & (set(c.rd) | set(c.wr)):
                same = c.is_dot and c.base == p.base and not (vw & set(sum((regs_of(o) for o in c.ops[1:3]), [])))
                if not same:
                    n = max(n, 3)
            if c.is_permlane and vw & set(c.rd):
                n = max(n, 2)
            if c.is_dpp and vw & set(c.rd):
                n = max(n, 2)
            if c.base in ("v_readfirstlane_b32", "v_readlane_b32") and vw & set(c.rd):
                n = max(n, 1)
            if sw & set(c.rd):
                n = max(n, 2)
        if (c.is_vmem or c.is_ds) and p.is_dot and vw & set(c.rd):
            n = max(n, 3)
        if (c.is_vmem or c.is_ds) and p.is_trans and vw & set(c.rd):
            n = max(n, 1)
        if c.is_vmem and sw & set(c.rd):
            n = max(n, 5)
        if c.is_salu and sw & set(c.rd):
            n = max(n, 1)
    elif p.is_vmem:
        if p.store_data and set(p.store_data) & set(c.wr):
            n = max(n, 2)
    elif p.is_ds:
        if ("write" in p.mn) and c.is_valu and set(p.rd) & set(c.wr):
            n = max(n, 1)
    elif p.is_salu:
        if "m0" in pw and c.is_vmem and "m0" in c.rd:
            n = max(n, 1)
        if "exec" in pw and c.is_valu and c.is_dpp:
            n = max(n, 1)
    return n


def pad_hazards(lines):
    out = []
    hist = []
    nops = 0
    for text in lines:
        ins = Ins(text)
        if ins.label or ins.directive or ins.empty:
            out.append(text)
            continue
        dist = 0
        need = 0
        for p in reversed(hist):
            k = need_states(p, ins)
            if k > dist:
                need = max(need, k - dist)
            dist += p.states()
            if dist >= 20:
                break
        while need > 0:
            k = min(need, 16)
            nop = Ins(f"s_nop {k-1}")
            out.append(f"    s_nop {k-1}")
            hist.append(nop)
            nops += 1
            need -= k
        out.append(text)
        hist.append(ins)
        if len(hist) > 40:
            hist = hist[-30:]
    return out, nops


class Asm:
    def __init__(self):
        self.lines = []
        self.vm = 0
        self.lg = 0
        self.vm_done = 0
        self.lg_done = 0

    def __call__(self, s):
        for l in s.split("\n"):
            l = l.strip()
            if not l:
                continue
            if l.endswith(":") or l.startswith("."):
                self.lines.append(l)
            else:
                self.lines.append("    " + l)

    def vmem(self, s):
        self(s)
        self.vm += 1
        return self.vm

    def ds(self, s):
        self(s)
        self.lg += 1
        return self.lg

    def wait(self, vm=None, lg=None):
        parts = []
        if vm is not None and vm > self.vm_done:
            n = self.vm - vm
            if n > 63:
                n = 63
            parts.append(f"vmcnt({n})")
            self.vm_done = self.vm - n
        if lg is not None and lg > self.lg_done:
            n = self.lg - lg
            if n > 15:
                n = 15
                self.lg_done = self.lg - 15
            else:
                self.lg_done = lg
            parts.append(f"lgkmcnt({n})")
        if parts:
            self("s_waitcnt " + " ".join(parts))

    def wait_all(self):
        self("s_waitcnt vmcnt(0) lgkmcnt(0)")
        self.vm_done = self.vm
        self.lg_done = self.lg

    def wait_lg0(self):
        self("s_waitcnt lgkmcnt(0)")
        self.lg_done = self.lg

    def text(self):
        out, nops = pad_hazards(self.lines)
        self.nops = nops
        return "\n".join(out) + "\n"


def vr(b, n=1):
    return f"v{b}" if n == 1 else f"v[{b}:{b+n-1}]"


def ar(b, n=1):
    return f"a{b}" if n == 1 else f"a[{b}:{b+n-1}]"


def sr(b, n=1):
    return f"s{b}" if n == 1 else f"s[{b}:{b+n-1}]"


KD = """.p2align 6
.amdhsa_kernel {name}
  .amdhsa_next_free_vgpr {nv}
  .amdhsa_next_free_sgpr {ns}
  .amdhsa_accum_offset {acc}
  .amdhsa_group_segment_fixed_size 0
  .amdhsa_kernarg_size 72
  .amdhsa_user_sgpr_count 2
  .amdhsa_user_sgpr_kernarg_segment_ptr 1
  .amdhsa_system_sgpr_workgroup_id_x 1
  .amdhsa_float_denorm_mode_32 3
.end_amdhsa_kernel
"""
```

```python
import sys, os
sys.path.insert(0, os.path.dirname(os.path.abspath(__file__)))
from asm import *

OFF_WFP = 0x0
OFF_WQKVP = 0xA20000
OFF_WOP = 0xC60000
OFF_XA = 0xD10000
OFF_XB = 0xF50000
OFF_PQM = 0x1190000
OFF_QREM = 0x1390000
OFF_KV = 0x13D0000
OFF_PART = 0x1400000
OFF_STAMP = 0x8000000
XF_BYTES = 0x240000
LOG2E = 0x3FB8AA3B
NLOG2E = 0xBFB8AA3B
INV576 = 0x3AE38E39
EPS_LN = 0x3727C5AC
EPS_6 = 0x358637BD

STAMP = False


def start(a, name, nwg):
    a(f".globl {name}\n.p2align 8\n.type {name},@function\n{name}:")
    a(f"s_cmp_ge_u32 s2, {nwg}\ns_cbranch_scc1 L_{name}_end")
    if STAMP:
        a("s_memrealtime s[92:93]\ns_memtime s[94:95]\ns_load_dwordx2 s[90:91], s[0:1], 56")
    a("s_load_dwordx2 s[4:5], s[0:1], 64")
    a("v_lshrrev_b32 v1, 6, v0")
    a("v_readfirstlane_b32 s6, v1")
    a("v_and_b32 v1, 63, v0")
    a("v_lshlrev_b32 v2, 4, v1")


def finish(a, name, nwaves):
    if STAMP:
        a("s_waitcnt vmcnt(0) lgkmcnt(0)")
        a("s_memrealtime s[96:97]\ns_memtime s[98:99]")
        a("s_lshr_b32 s90, s90, 9\ns_and_b32 s90, s90, 31\ns_lshl_b32 s90, s90, 17")
        a(f"s_mul_i32 s91, s2, {nwaves}\ns_add_u32 s91, s91, s6\ns_lshl_b32 s91, s91, 5")
        a(f"s_add_u32 s90, s90, s91\ns_add_u32 s90, s90, {OFF_STAMP}")
        a("s_add_u32 s90, s4, s90\ns_addc_u32 s91, s5, 0")
        a("s_waitcnt lgkmcnt(0)")
        a("s_mov_b64 exec, -1")
        for i in range(8):
            a(f"v_mov_b32 v{4+i}, s{92+i}")
        a("v_mov_b32 v3, 0")
        a("global_store_dwordx4 v3, v[4:7], s[90:91]")
        a("global_store_dwordx4 v3, v[8:11], s[90:91] offset:16")
    a(f"L_{name}_end:\ns_endpgm")


def srd(a, d, lo, hi, off, size):
    a(f"s_add_u32 s{d}, {lo}, {off}")
    a(f"s_addc_u32 s{d+1}, {hi}, 0")
    a(f"s_and_b32 s{d+1}, s{d+1}, 0xffff")
    a(f"s_mov_b32 s{d+2}, {size}")
    a(f"s_mov_b32 s{d+3}, 0x20000")


def xg_sum(a, x, t):
    a(f"v_mov_b32 v{t}, v{x}")
    a(f"v_permlane32_swap_b32 v{x}, v{t}")
    a(f"v_add_f32 v{x}, v{x}, v{t}")
    a(f"v_mov_b32 v{t}, v{x}")
    a(f"v_permlane16_swap_b32 v{x}, v{t}")
    a(f"v_add_f32 v{x}, v{x}, v{t}")


def w2_frow(hk, half):
    ps, u = divmod(hk, 6)
    if u < 4:
        return 144 * u + 48 * ps + 16 * half
    return 144 * (2 * (u - 4) + half) + 48 * ps + 32


def k0():
    a = Asm()
    name = "k0_kernel"
    start(a, name, 218)
    a("s_load_dwordx4 s[24:27], s[0:1], 0")
    a("s_load_dwordx2 s[28:29], s[0:1], 16")
    a("s_load_dwordx4 s[32:35], s[0:1], 32")
    a("v_and_b32 v3, 15, v1")
    a("v_lshrrev_b32 v4, 4, v1")
    a("s_waitcnt lgkmcnt(0)")
    LV = 16

    def gather(rowoff, voff):
        for ks in range(18):
            for t in range(8):
                o = rowoff(ks, t)
                a(f"s_mov_b32 s20, {o}")
                a(f"buffer_load_ushort v{LV+ks*8+t}, {voff(ks)}, s[8:11], s20 offen")

    def div9(src):
        a(f"s_mul_i32 s21, {src}, 7282\ns_lshr_b32 s21, s21, 16")
        a(f"s_mul_i32 s3, s21, 9\ns_sub_u32 s3, {src}, s3")
        a("s_mul_i32 s22, s3, 11\ns_lshr_b32 s22, s22, 5")
        a("s_mul_i32 s23, s22, 3\ns_sub_u32 s23, s3, s23")

    def ncol(p, hf):
        a("v_lshrrev_b32 v5, 2, v3\nv_lshlrev_b32 v5, 3, v5\nv_and_b32 v6, 3, v3\nv_add_u32 v5, v5, v6")
        a(f"s_lshl_b32 s36, {p}, 5\ns_lshl_b32 s37, {hf}, 2\ns_add_u32 s36, s36, s37")
        a("v_add_u32 v5, s36, v5\nv_lshlrev_b32 v5, 1, v5")

    a("s_cmp_ge_u32 s2, 72\ns_cbranch_scc1 L_k0_w2")
    a("s_lshl_b32 s7, s2, 2\ns_add_u32 s7, s7, s6")
    div9("s7")
    srd(a, 8, "s32", "s33", 0, 576 * 4608 * 2)
    a("s_mul_i32 s16, s21, 324\ns_mul_i32 s17, s22, 54\ns_add_u32 s16, s16, s17\ns_add_u32 s16, s16, s23")
    a(f"s_lshl_b32 s16, s16, 10\ns_add_u32 s16, s16, {OFF_WFP}")
    a(f"s_mov_b32 s17, 3072\ns_mov_b32 s18, {INV576}")
    a(f"v_mul_u32_u24 v5, {8*9216}, v4")
    a("s_lshl_b32 s7, s7, 5\nv_lshlrev_b32 v6, 1, v3\nv_add_u32 v5, v5, v6\nv_add_u32 v5, s7, v5")
    gather(lambda ks, t: (32 * ks + t) * 9216, lambda ks: "v5")
    a("s_branch L_k0_tail")
    a("L_k0_w2:")
    a("s_cmp_ge_u32 s2, 144\ns_cbranch_scc1 L_k0_qkv")
    a("s_sub_u32 s7, s2, 72\ns_lshl_b32 s7, s7, 2\ns_add_u32 s7, s7, s6")
    div9("s7")
    srd(a, 8, "s34", "s35", 0, 576 * 4608 * 2)
    a("s_mul_i32 s16, s21, 324\ns_mul_i32 s17, s22, 54\ns_add_u32 s16, s16, s17\ns_add_u32 s16, s16, s23")
    a(f"s_add_u32 s16, s16, 162\ns_lshl_b32 s16, s16, 10\ns_add_u32 s16, s16, {OFF_WFP}")
    a("s_mov_b32 s17, 3072\ns_mov_b32 s18, 0")
    a("s_and_b32 s38, s21, 3")
    a("s_lshr_b32 s39, s38, 1\ns_add_u32 s39, s39, 4\ns_and_b32 s40, s38, 1")
    a("s_cmp_eq_u32 s23, 2\ns_cselect_b32 s38, s39, s38\ns_cselect_b32 s40, s40, s23")
    a("s_mul_i32 s39, s22, 6\ns_add_u32 s38, s38, s39")
    ncol("s38", "s40")
    a(f"v_mul_u32_u24 v6, {4*1152}, v4\nv_add_u32 v5, v5, v6")
    a(f"s_lshr_b32 s39, s21, 2\ns_mul_i32 s39, s39, {576*1152}\nv_add_u32 v5, s39, v5")
    gather(lambda ks, t: (w2_frow(ks, t >> 2) + (t & 3)) * 1152, lambda ks: "v5")
    a("s_branch L_k0_tail")
    a("L_k0_qkv:")
    a("s_cmp_ge_u32 s2, 176\ns_cbranch_scc1 L_k0_wo")
    a("s_sub_u32 s7, s2, 144")
    srd(a, 8, "s26", "s27", 0, 576 * 1728 * 2)
    a(f"s_mul_i32 s16, s7, 73728\ns_lshl_b32 s17, s6, 10\ns_add_u32 s16, s16, s17\ns_add_u32 s16, s16, {OFF_WQKVP}")
    a(f"s_mov_b32 s17, 4096\ns_mov_b32 s18, {INV576}")
    a("s_add_u32 s38, s6, 1\ns_and_b32 s38, s38, 3\ns_mul_i32 s38, s38, 576")
    a("v_add_u32 v5, s38, v3")
    a("s_and_b32 s39, s7, 3\ns_add_u32 s40, s39, 1\ns_and_b32 s40, s40, 3")
    a("s_lshl_b32 s39, s39, 1\ns_lshl_b32 s40, s40, 1\ns_add_u32 s41, s40, 1")
    a("v_lshrrev_b32 v6, 1, v3\nv_and_b32 v7, 1, v3")
    a("v_mov_b32 v8, 0x100000")
    a("v_add_u32 v9, 1168, v7\nv_cmp_eq_u32 vcc, s39, v6\nv_cndmask_b32 v8, v8, v9, vcc")
    a("v_add_u32 v9, 592, v7\nv_cmp_eq_u32 vcc, s40, v6\nv_cndmask_b32 v8, v8, v9, vcc")
    a("v_add_u32 v9, 16, v7\nv_cmp_eq_u32 vcc, s41, v6\nv_cndmask_b32 v8, v8, v9, vcc")
    a("s_cmp_eq_u32 s6, 2\ns_cselect_b64 vcc, -1, 0")
    a("v_cndmask_b32 v5, v5, v8, vcc")
    a("s_mul_i32 s38, s7, 18\nv_add_u32 v5, s38, v5\nv_lshlrev_b32 v5, 1, v5")
    a(f"v_mul_u32_u24 v6, {8*3456}, v4\nv_add_u32 v5, v5, v6")
    gather(lambda ks, t: (32 * ks + t) * 3456, lambda ks: "v5")
    a("s_branch L_k0_tail")
    a("L_k0_wo:")
    a("s_cmp_ge_u32 s2, 185\ns_cbranch_scc1 L_k0_x")
    a("s_sub_u32 s7, s2, 176\ns_lshl_b32 s7, s7, 2\ns_add_u32 s7, s7, s6")
    div9("s7")
    srd(a, 8, "s28", "s29", 0, 576 * 576 * 2)
    a("s_lshr_b32 s38, s3, 1\ns_and_b32 s40, s3, 1")
    a("s_mul_i32 s16, s38, 36\ns_add_u32 s16, s16, s40")
    a("s_mul_i32 s39, s21, 9\ns_add_u32 s39, s39, 1\ns_lshr_b32 s39, s39, 1\ns_add_u32 s38, s38, s39")
    a("s_lshr_b32 s39, s21, 1\ns_mul_i32 s39, s39, 9\ns_add_u32 s39, s39, 4\ns_and_b32 s41, s21, 1")
    a("s_cmp_eq_u32 s3, 8\ns_cselect_b32 s38, s39, s38\ns_cselect_b32 s40, s41, s40\ns_cselect_b32 s17, 1024, 2048"
      .replace("s_cselect_b32 s17, 1024, 2048", "s_cselect_b32 s17, 1, 2"))
    a("s_lshl_b32 s17, s17, 10")
    a("s_mul_i32 s39, s21, 162\ns_add_u32 s16, s16, s39")
    a(f"s_lshl_b32 s16, s16, 10\ns_add_u32 s16, s16, {OFF_WOP}\ns_mov_b32 s18, 0")
    ncol("s38", "s40")
    a(f"v_mul_u32_u24 v6, {18*1152}, v4\nv_add_u32 v7, v5, v6")
    a(f"v_mul_u32_u24 v6, {4*1152}, v4\nv_add_u32 v5, v5, v6")

    def wo_row(ks, t):
        if ks < 16:
            return (18 * (2 * ks + (t >> 2)) + (t & 3)) * 1152
        return (18 * (16 * (ks - 16) + 4 * (t >> 1)) + 16 + (t & 1)) * 1152
    gather(wo_row, lambda ks: "v5" if ks < 16 else "v7")
    a("L_k0_tail:")
    srd(a, 12, "s4", "s5", "s16", 18 * 4096)
    a("s_waitcnt vmcnt(0)")
    for i in range(144):
        a(f"v_lshlrev_b32 v{LV+i}, 16, v{LV+i}")
    for j in range(4):
        a(f"v_mov_b32 v{8+j}, v{LV+j}")
    for i in range(4, 144):
        a(f"v_add_f32 v{8+(i&3)}, v{8+(i&3)}, v{LV+i}")
    a("v_add_f32 v8, v8, v9\nv_add_f32 v10, v10, v11\nv_add_f32 v8, v8, v10")
    xg_sum(a, 8, 9)
    a("v_mul_f32 v8, s18, v8")
    for i in range(144):
        a(f"v_sub_f32 v{LV+i}, v{LV+i}, v8")
    a("s_mov_b32 s20, 0")
    for ks in range(18):
        b = LV + ks * 8
        for j in range(4):
            a(f"v_cvt_pk_bf16_f32 v{b+j}, v{b+2*j}, v{b+2*j+1}")
        a(f"buffer_store_dwordx4 v[{b}:{b+3}], v2, s[12:15], s20 offen")
        a("s_add_u32 s20, s20, s17")
    a("s_branch L_k0_done")
    a("L_k0_x:")
    a("s_cmp_ge_u32 s2, 217\ns_cbranch_scc1 L_k0_zero")
    a("s_sub_u32 s7, s2, 185\ns_lshl_b32 s7, s7, 2\ns_add_u32 s7, s7, s6\ns_mul_i32 s7, s7, 18432")
    srd(a, 8, "s24", "s25", "s7", 18432)
    a(f"s_add_u32 s7, s7, {OFF_XA}")
    srd(a, 12, "s4", "s5", "s7", 18432)
    a("v_mul_u32_u24 v5, 1152, v3\nv_lshlrev_b32 v6, 4, v4\nv_add_u32 v5, v5, v6")
    for ks in range(18):
        a(f"buffer_load_dwordx4 v[{LV+4*ks}:{LV+4*ks+3}], v5, s[8:11], 0 offen offset:{64*ks}")
    for ks in range(18):
        a(f"s_waitcnt vmcnt(17)")
        a(f"s_mov_b32 s20, {1024*ks}")
        a(f"buffer_store_dwordx4 v[{LV+4*ks}:{LV+4*ks+3}], v2, s[12:15], s20 offen")
    a("s_branch L_k0_done")
    a("L_k0_zero:")
    srd(a, 12, "s4", "s5", OFF_KV, 49152)
    a("v_lshlrev_b32 v5, 4, v0")
    for j in range(4):
        a(f"v_mov_b32 v{8+j}, 0")
    for j in range(12):
        a(f"s_mov_b32 s20, {4096*j}")
        a("buffer_store_dwordx4 v[8:11], v5, s[12:15], s20 offen")
    a("L_k0_done:")
    finish(a, name, 4)
    return name, a, dict(nv=160, acc=160, ns=102), (218, 256, 0)


def dma_x_tile(a, srdx):
    a("s_mul_i32 s20, s6, 18432")
    last = None
    for i in range(18):
        if i % 4 == 0:
            if i:
                a("s_add_u32 s20, s20, 4096")
            a("s_mov_b32 m0, s20")
        last = a.vmem(f"buffer_load_dwordx4 v2, s[{srdx}:{srdx+3}], s20 offen offset:{(i%4)*1024} lds")
    return last


def ln_finalize(a, s, q, t):
    xg_sum(a, s, t)
    xg_sum(a, q, t)
    a(f"v_mul_f32 v{s}, {INV576}, v{s}")
    a(f"v_mul_f32 v{q}, {INV576}, v{q}")
    a(f"v_fma_f32 v{q}, -v{s}, v{s}, v{q}")
    a(f"v_max_f32 v{q}, 0, v{q}")
    a(f"v_add_f32 v{q}, {EPS_LN}, v{q}")
    a(f"v_rsq_f32 v{s}, v{q}")


def phi_ops(src, rs, c2, dst, t):
    return [f"v_min_f32 v{t}, 0, v{src}",
            f"v_mul_f32 v{t}, v{t}, v{c2}",
            f"v_exp_f32 v{t}, v{t}",
            f"v_max_f32 v{dst}, 0, v{src}",
            f"v_add_f32 v{t}, {EPS_6}, v{t}",
            f"v_fma_f32 v{dst}, v{dst}, v{rs}, v{t}"]


def interleave(lists):
    out = []
    n = max(len(l) for l in lists)
    for i in range(n):
        for l in lists:
            if i < len(l):
                out.append(l[i])
    return out


def k1():
    a = Asm()
    name = "k1_kernel"
    start(a, name, 256)
    a("s_lshr_b32 s7, s2, 3\ns_and_b32 s3, s2, 7")
    a("s_lshl_b32 s21, s3, 2\ns_add_u32 s21, s21, s6")
    a(f"s_mul_i32 s22, s7, 73728\ns_add_u32 s22, s22, {OFF_XA}")
    a(f"s_mul_i32 s23, s21, 73728\ns_add_u32 s23, s23, {OFF_WQKVP}")
    a("s_waitcnt lgkmcnt(0)")
    srd(a, 12, "s4", "s5", "s22", 73728)
    srd(a, 8, "s4", "s5", "s23", 73728)
    xt = dma_x_tile(a, 12)
    D = 8
    ring = {}

    def wload(ks):
        a(f"s_mov_b32 s20, {ks*4096}")
        for t in range(4):
            r = ((ks % D) * 4 + t) * 4
            ring[(ks, t)] = a.vmem(f"buffer_load_dwordx4 a[{r}:{r+3}], v2, s[8:11], s20 offen offset:{t*1024}")
    for ks in range(D):
        wload(ks)
    XB, ACC, ST, SUM, SQ = 8, 56, 120, 128, 129
    VX0, VX1, VS = 3, 4, 5
    STAT = 73728
    a(f"v_add_u32 v{VX1}, 36864, v2")
    a(f"s_mul_i32 s20, s6, 18432\nv_add_u32 v{VS}, s20, v2")
    a(f"v_mov_b32 v{SUM}, 0\nv_mov_b32 v{SQ}, 0\ns_mov_b32 s24, 0x3f803f80")
    a(f"s_lshl_b32 s22, s7, 16\ns_add_u32 s22, s22, {OFF_PQM}")
    srd(a, 16, "s4", "s5", "s22", 65536)
    a(f"s_lshl_b32 s22, s7, 13\ns_add_u32 s22, s22, {OFF_QREM}")
    srd(a, 28, "s4", "s5", "s22", 8192)
    a(f"s_mul_i32 s22, s3, 6144\ns_add_u32 s22, s22, {OFF_KV}")
    srd(a, 32, "s4", "s5", "s22", 6144)
    a.wait(vm=xt)
    a("s_barrier")
    xr = {}
    sr_ = {}

    def xread(ks, mt):
        base = "v2" if mt < 2 else f"v{VX1}"
        r = XB + (ks % 3) * 16 + mt * 4
        xr[(ks, mt)] = a.ds(f"ds_read_b128 v[{r}:{r+3}], {base} offset:{((mt%2)*18+ks)*1024}")

    def sread(ks):
        r = ST + (ks % 2) * 4
        sr_[ks] = a.ds(f"ds_read_b128 v[{r}:{r+3}], v{VS} offset:{ks*1024}")
    for ks in range(2):
        for mt in range(4):
            xread(ks, mt)
    sread(0)
    for ks in range(18):
        a.wait(vm=ring[(ks, 3)], lg=max(xr[(ks, 3)], sr_[ks]))
        fill = []
        r = ST + (ks % 2) * 4
        for j in range(4):
            fill.append(f"v_dot2c_f32_bf16 v{SUM}, s24, v{r+j}")
            fill.append(f"v_dot2c_f32_bf16 v{SQ}, v{r+j}, v{r+j}")
        n = 0
        for t in range(4):
            w = ((ks % D) * 4 + t) * 4
            for mt in range(4):
                x = XB + (ks % 3) * 16 + mt * 4
                d = ACC + t * 16 + mt * 4
                c = "0" if ks == 0 else f"v[{d}:{d+3}]"
                if t < 3:
                    a(f"v_mfma_f32_16x16x32_bf16 v[{d}:{d+3}], v[{x}:{x+3}], a[{w}:{w+3}], {c}")
                else:
                    a(f"v_mfma_f32_16x16x32_bf16 v[{d}:{d+3}], a[{w}:{w+3}], v[{x}:{x+3}], {c}")
                if n < 4 and ks + 2 < 18:
                    xread(ks + 2, n)
                elif n == 4 and ks + 1 < 18:
                    sread(ks + 1)
                elif n >= 5 and fill:
                    a(fill.pop(0))
                n += 1
        assert not fill
        if ks + D < 18:
            wload(ks + D)
    T0 = 130
    ln_finalize(a, SUM, SQ, T0)
    a(f"v_and_b32 v{VX0}, 15, v1\nv_lshrrev_b32 v{VX1}, 4, v1")
    a(f"s_lshl_b32 s20, s6, 6\ns_add_u32 s20, s20, {STAT}")
    a(f"v_lshl_add_u32 v{T0}, v{VX0}, 2, s20")
    a.ds(f"ds_write_b32 v{T0}, v{SUM}")
    a(f"v_lshlrev_b32 v{T0+1}, 2, v{VX0}\nv_add_u32 v{T0+1}, {STAT}, v{T0+1}")
    a(f"v_lshlrev_b32 v{T0+2}, 4, v{VX1}\nv_add_u32 v{T0+2}, {STAT}, v{T0+2}")
    a.wait_lg0()
    a("s_barrier")
    RS2, C2, RS1, C1 = 8, 24, 40, 44
    for mt in range(4):
        a.ds(f"ds_read_b128 v[{RS2+4*mt}:{RS2+4*mt+3}], v{T0+2} offset:{64*mt}")
    for mt in range(4):
        a.ds(f"ds_read_b32 v{RS1+mt}, v{T0+1} offset:{64*mt}")
    a("s_add_u32 s25, s6, 1\ns_and_b32 s25, s25, 3")
    a("s_lshl_b32 s20, s25, 4\ns_mov_b64 s[36:37], 0xffff\ns_lshl_b64 s[36:37], s[36:37], s20")
    a("s_mov_b32 s38, 0x000f000f\ns_mov_b32 s39, 0x000f000f\ns_lshl_b32 s20, s6, 2\ns_lshl_b64 s[38:39], s[38:39], s20")
    a("s_mov_b32 s40, 0x00030003\ns_mov_b32 s41, 0x00030003\ns_lshl_b64 s[40:41], s[40:41], s20")
    a("s_and_b64 s[42:43], s[36:37], s[38:39]")
    SEL = 134
    a(f"v_lshlrev_b32 v{T0}, 2, v{VX1}\nv_sub_u32 v{T0}, v{VX0}, v{T0}")
    for j in (0, 1, 4, 5, 2, 3):
        a(f"v_mov_b32 v{SEL+j}, 0")
    a(f"v_mov_b32 v{T0+1}, 0x3f80\nv_mov_b32 v{T0+2}, 0x3f800000")
    for d in range(4):
        a(f"v_cmp_eq_u32 vcc, {d}, v{T0}")
        a(f"v_cndmask_b32 v{SEL+2+(d>>1)}, v{SEL+2+(d>>1)}, v{T0+1+(d&1)}, vcc")
    OA, OB, OQ, OR_ = 48, 49, 50, 51
    a(f"v_lshlrev_b32 v{OA}, 2, v1")
    a(f"v_and_b32 v{OB}, 3, v{VX0}\nv_lshl_add_u32 v{OB}, v{VX1}, 2, v{OB}\nv_lshlrev_b32 v{OB}, 2, v{OB}")
    a(f"s_lshl_b32 s20, s6, 6\nv_add_u32 v{OB}, s20, v{OB}")
    a(f"s_lshr_b32 s20, s21, 1\ns_lshl_b32 s20, s20, 10\ns_and_b32 s22, s21, 1\ns_lshl_b32 s22, s22, 3\ns_add_u32 s20, s20, s22")
    a(f"v_add_u32 v{OQ}, s20, v2")
    a(f"s_lshr_b32 s20, s3, 1\ns_lshl_b32 s20, s20, 9\ns_and_b32 s22, s3, 1\ns_lshl_b32 s22, s22, 2\ns_add_u32 s20, s20, s22")
    a(f"v_lshl_add_u32 v{OR_}, v1, 3, s20")
    a.wait_lg0()
    for i in range(16):
        a(f"v_mul_f32 v{C2+i}, {LOG2E}, v{RS2+i}")
    for i in range(4):
        a(f"v_mul_f32 v{C1+i}, {LOG2E}, v{RS1+i}")
    KA, VA, RA, QA = ACC, ACC + 16, ACC + 32, ACC + 48
    TT = 140
    for mt in range(4):
        for l in interleave([phi_ops(KA + 4 * mt + r, RS2 + 4 * mt + r, C2 + 4 * mt + r, KA + 4 * mt + r, TT + r) for r in range(4)]):
            a(l)
    for i in range(16):
        a(f"v_mul_f32 v{VA+i}, v{VA+i}, v{RS2+i}")
    for mt in range(4):
        for r in range(4):
            a(f"v_mul_f32 v{TT+4+r}, v{RA+4*mt+r}, v{RS2+4*mt+r}")
        for l in interleave([phi_ops(RA + 4 * mt + r, RS2 + 4 * mt + r, C2 + 4 * mt + r, RA + 4 * mt + r, TT + r) for r in range(4)]):
            a(l)
        for r in range(4):
            a(f"v_cndmask_b32 v{RA+4*mt+r}, v{RA+4*mt+r}, v{TT+4+r}, s[40:41]")
    KF, VF, RF = 148, 156, 164
    for (src, dst) in ((KA, KF), (VA, VF), (RA, RF)):
        for i in range(8):
            a(f"v_cvt_pk_bf16_f32 v{dst+i}, v{src+2*i}, v{src+2*i+1}")
    MM, RM, MR, RR, DT = 172, 176, 180, 184, 188
    for s in range(2):
        for (d, x, y) in ((MM, KF, VF), (MR, KF, RF), (RM, RF, VF), (RR, RF, RF)):
            c = "0" if s == 0 else f"v[{d}:{d+3}]"
            a(f"v_mfma_f32_16x16x32_bf16 v[{d}:{d+3}], v[{x+4*s}:{x+4*s+3}], v[{y+4*s}:{y+4*s+3}], {c}")
    for mt in range(4):
        sel = SEL + 2 if mt % 2 == 0 else SEL
        x = RF + 4 * (mt >> 1)
        a(f"v_mfma_f32_16x16x32_bf16 v[{DT+4*mt}:{DT+4*mt+3}], v[{x}:{x+3}], v[{sel}:{sel+3}], 0")
    a("s_lshl_b32 s20, s6, 10")
    for r in range(4):
        a.vmem(f"buffer_atomic_add_f32 v{MM+r}, v{OA}, s[32:35], s20 offen offset:{r*256}")
    a("s_mov_b32 s20, 4096")
    a("s_mov_b64 exec, s[38:39]")
    for r in range(4):
        a.vmem(f"buffer_atomic_add_f32 v{MR+r}, v{OB}, s[32:35], s20 offen offset:{r*256}")
    a("s_mov_b64 exec, s[42:43]")
    for r in range(2):
        a.vmem(f"buffer_atomic_add_f32 v{RR+r}, v{OA}, s[32:35], s20 offen offset:{1536+r*256}")
    a("s_mov_b64 exec, s[36:37]")
    for r in range(2):
        a.vmem(f"buffer_atomic_add_f32 v{RM+r}, v{OA}, s[32:35], s20 offen offset:{1024+r*256}")
    for mt in range(4):
        a(f"v_cvt_pk_bf16_f32 v{DT+4*mt}, v{DT+4*mt+2}, v{DT+4*mt+3}")
        a(f"s_mov_b32 s20, {mt*2048}")
        a.vmem(f"buffer_store_dword v{DT+4*mt}, v{OR_}, s[28:31], s20 offen")
    a("s_mov_b64 exec, -1")
    for mt in range(4):
        for l in interleave([phi_ops(QA + 4 * mt + r, RS1 + mt, C1 + mt, QA + 4 * mt + r, TT + r) for r in range(4)]):
            a(l)
        a(f"v_cvt_pk_bf16_f32 v{QA+4*mt}, v{QA+4*mt}, v{QA+4*mt+1}")
        a(f"v_cvt_pk_bf16_f32 v{QA+4*mt+1}, v{QA+4*mt+2}, v{QA+4*mt+3}")
        a(f"s_mov_b32 s20, {mt*16384}")
        a.vmem(f"buffer_store_dwordx2 v[{QA+4*mt}:{QA+4*mt+1}], v{OQ}, s[16:19], s20 offen")
    finish(a, name, 4)
    return name, a, dict(nv=204 + 128, acc=204, ns=102), (256, 256, 73728 + 256)


def k2():
    a = Asm()
    name = "k2_kernel"
    start(a, name, 256)
    a("s_and_b32 s7, s2, 7\ns_lshr_b32 s3, s2, 5\ns_lshl_b32 s3, s3, 3\ns_add_u32 s7, s7, s3")
    a("s_lshr_b32 s3, s2, 3\ns_and_b32 s3, s3, 3")
    a(f"s_mul_i32 s21, s6, 12288\ns_add_u32 s21, s21, {OFF_KV}")
    a(f"s_lshl_b32 s22, s7, 15\ns_add_u32 s22, s22, {OFF_PQM}")
    a(f"s_lshl_b32 s23, s7, 12\ns_add_u32 s23, s23, {OFF_QREM}")
    a(f"s_mul_i32 s24, s3, {162*1024}\ns_add_u32 s24, s24, {OFF_WOP}")
    a("v_lshlrev_b32 v3, 2, v1")
    a("v_and_b32 v4, 3, v1\nv_lshrrev_b32 v5, 4, v1\nv_lshl_add_u32 v4, v5, 2, v4")
    a("v_and_b32 v5, 12, v1\nv_lshl_add_u32 v4, v5, 2, v4\nv_lshlrev_b32 v4, 2, v4")
    a("v_lshlrev_b32 v5, 3, v1")
    a("s_waitcnt lgkmcnt(0)")
    srd(a, 8, "s4", "s5", "s21", 12288)
    srd(a, 12, "s4", "s5", "s22", 32768)
    srd(a, 16, "s4", "s5", "s23", 4096)
    srd(a, 28, "s4", "s5", "s24", 162 * 1024)
    KVR, BR, A12, D1, D2 = 8, 56, 108, 172, 236
    kvt = {}
    for G in range(2):
        b = KVR + 24 * G
        a(f"s_mov_b32 s20, {6144*G+4096}")
        for r in range(4):
            a.vmem(f"buffer_load_dword v{b+16+r}, v4, s[8:11], s20 offen offset:{r*256}")
        for r in range(4):
            a.vmem(f"buffer_load_dword v{b+20+r}, v3, s[8:11], s20 offen offset:{1024+r*256}")
        a(f"s_mov_b32 s20, {6144*G}")
        for i in range(16):
            kvt[G] = a.vmem(f"buffer_load_dword v{b+i}, v3, s[8:11], s20 offen offset:{i*256}")
    a("s_lshl_b32 s20, s6, 9")
    for mt in range(2):
        b = BR + 26 * mt
        a.vmem(f"buffer_load_dwordx2 v[{b}:{b+1}], v5, s[16:19], s20 offen offset:{mt*2048}")
    for mt in range(2):
        a(f"s_lshl_b32 s20, s6, 12\ns_add_u32 s20, s20, {mt*16384}")
        for q in range(4):
            b = BR + 26 * mt + 6 * q + 2
            pqt = a.vmem(f"buffer_load_dwordx4 v[{b}:{b+3}], v2, s[12:15], s20 offen offset:{q*1024}")
    wt = {}
    a("s_mul_i32 s20, s6, 36864")
    for i in range(36):
        if i % 4 == 0 and i:
            a("s_add_u32 s20, s20, 4096")
        wt[i] = a.vmem(f"buffer_load_dwordx4 a[{4*i}:{4*i+3}], v2, s[28:31], s20 offen offset:{(i%4)*1024}")
    a(f"s_mul_i32 s21, s7, 36864\ns_add_u32 s22, s21, {OFF_XA}\ns_add_u32 s21, s21, {OFF_XB}")
    srd(a, 32, "s4", "s5", "s22", 36864)
    srd(a, 36, "s4", "s5", "s21", 36864)
    a("s_mul_i32 s21, s3, 9\ns_add_u32 s21, s21, 1\ns_lshr_b32 s21, s21, 1\ns_add_u32 s21, s21, s6\ns_lshl_b32 s21, s21, 10")
    a("s_add_u32 s22, s21, 18432")
    a("s_lshr_b32 s23, s3, 1\ns_mul_i32 s23, s23, 9\ns_add_u32 s23, s23, 4\ns_lshl_b32 s23, s23, 10")
    a("s_and_b32 s24, s3, 1\ns_lshl_b32 s24, s24, 3\ns_add_u32 s23, s23, s24\ns_add_u32 s24, s23, 18432")
    for mt in range(2):
        xt = a.vmem(f"buffer_load_dwordx4 a[{216+4*mt}:{216+4*mt+3}], v2, s[32:35], s{21+mt} offen")
    for j in range(4):
        m1 = 0x000f000f << (4 * j)
        a(f"s_mov_b32 s{40+2*j}, {m1}\ns_mov_b32 s{41+2*j}, {m1}")
        g0 = (j + 1) & 3
        m0 = 0xffff << (16 * g0)
        a(f"s_mov_b32 s{48+2*j}, {m0 & 0xffffffff}\ns_mov_b32 s{49+2*j}, {m0 >> 32}")
    def aslots(hh):
        G = hh >> 2
        if hh & 1 == 0:
            return 2, G, 1 - G
        return 0, 2 + G, 3 - G
    for hh in range(8):
        mb, ru, rz = aslots(hh)
        a(f"v_mov_b32 v{A12+8*hh+rz}, 0\nv_mov_b32 v{A12+8*hh+4+rz}, 0")
    for G in range(2):
        b = KVR + 24 * G
        a.wait(vm=kvt[G])
        a(f"v_cvt_pk_bf16_f32 v{b+16}, v{b+16}, v{b+17}")
        a(f"v_cvt_pk_bf16_f32 v{b+17}, v{b+18}, v{b+19}")
        a(f"v_cvt_pk_bf16_f32 v{b+20}, v{b+20}, v{b+21}")
        a(f"v_cvt_pk_bf16_f32 v{b+22}, v{b+22}, v{b+23}")
        for j in range(4):
            hh = 4 * G + j
            mb, ru, rz = aslots(hh)
            a1, a2 = A12 + 8 * hh, A12 + 8 * hh + 4
            a(f"v_cvt_pk_bf16_f32 v{a1+mb}, v{b+4*j}, v{b+4*j+1}")
            a(f"v_cvt_pk_bf16_f32 v{a1+mb+1}, v{b+4*j+2}, v{b+4*j+3}")
            a(f"v_cndmask_b32 v{a1+ru}, 0, v{b+20}, s[{48+2*j}:{49+2*j}]")
            a(f"v_cndmask_b32 v{a2+mb}, 0, v{b+16}, s[{40+2*j}:{41+2*j}]")
            a(f"v_cndmask_b32 v{a2+mb+1}, 0, v{b+17}, s[{40+2*j}:{41+2*j}]")
            a(f"v_cndmask_b32 v{a2+ru}, 0, v{b+22}, s[{40+2*j}:{41+2*j}]")
    a.wait(vm=pqt)
    for mt in range(2):
        b = BR + 26 * mt
        for q in range(1, 5):
            a(f"v_mov_b32 v{b+6*q}, v{b}\nv_mov_b32 v{b+6*q+1}, v{b+1}")
    a("s_cmp_lg_u32 s6, 0\ns_cbranch_scc1 L_k2_noh")
    a(f"s_mov_b32 s20, {144*1024}")
    for i in range(18):
        if i % 4 == 0 and i:
            a("s_add_u32 s20, s20, 4096")
        a(f"buffer_load_dwordx4 a[{144+4*i}:{144+4*i+3}], v2, s[28:31], s20 offen offset:{(i%4)*1024}")
    for mt in range(2):
        a(f"buffer_load_dwordx2 a[{224+2*mt}:{224+2*mt+1}], v2, s[32:35], s{23+mt} offen")
    a("L_k2_noh:")

    def bop(hh, mt):
        q = hh >> 1
        b = BR + 26 * mt + 6 * q + (0 if hh & 1 == 0 else 4)
        return f"v[{b}:{b+3}]"
    for hh in range(8):
        for mt in range(2):
            d = D2 + 8 * (hh >> 2) + 4 * mt
            c = "0" if hh & 3 == 0 else f"v[{d}:{d+3}]"
            a2 = A12 + 8 * hh + 4
            a(f"v_mfma_f32_16x16x32_bf16 v[{d}:{d+3}], v[{a2}:{a2+3}], {bop(hh,mt)}, {c}")
    for hh in range(8):
        for mt in range(2):
            d = D1 + 8 * hh + 4 * mt
            a1 = A12 + 8 * hh
            a(f"v_mfma_f32_16x16x32_bf16 v[{d}:{d+3}], v[{a1}:{a1+3}], {bop(hh,mt)}, 0")
    a("s_lshl_b32 s20, s6, 13\nv_add_u32 v6, s20, v2")
    a("s_lshr_b32 s20, s6, 1\ns_lshl_b32 s20, s20, 11\ns_and_b32 s25, s6, 1\ns_lshl_b32 s25, s25, 3\ns_add_u32 s20, s20, s25\ns_add_u32 s20, s20, 32768")
    a("v_add_u32 v7, s20, v2")
    RC, ORM = 8, 24
    for G in range(2):
        for mt in range(2):
            d = D2 + 8 * G + 4 * mt
            rc = RC + 8 * G + 4 * mt
            a(f"v_add_f32 v{rc}, {EPS_6}, v{d+3}")
            a(f"v_rcp_f32 v{rc}, v{rc}")
    for G in range(2):
        for mt in range(2):
            d = D2 + 8 * G + 4 * mt
            rc = RC + 8 * G + 4 * mt
            a(f"v_mul_f32 v{d}, v{d}, v{rc}\nv_mul_f32 v{d+1}, v{d+1}, v{rc}")
            a(f"v_mov_b32 v{rc+1}, v{rc}")
            a(f"v_cvt_pk_bf16_f32 v{ORM+2*mt+G}, v{d}, v{d+1}")
    for i in range(4):
        rc = RC + 4 * i
        a(f"v_permlane16_swap_b32 v{rc}, v{rc+1}")
    for i in range(4):
        rc = RC + 4 * i
        a(f"v_mov_b32 v{rc+2}, v{rc}\nv_mov_b32 v{rc+3}, v{rc+1}")
    for i in range(4):
        rc = RC + 4 * i
        a(f"v_permlane32_swap_b32 v{rc}, v{rc+2}")
        a(f"v_permlane32_swap_b32 v{rc+1}, v{rc+3}")
    for mt in range(2):
        a.ds(f"ds_write_b64 v7, v[{ORM+2*mt}:{ORM+2*mt+1}] offset:{mt*1024}")
    OF = 28
    n = 0
    for q in range(4):
        for mt in range(2):
            o = OF + 4 * (n % 4)
            n += 1
            for s in range(2):
                hh = 2 * q + s
                d = D1 + 8 * hh + 4 * mt
                rc = RC + 8 * (hh >> 2) + 4 * mt + (hh & 3)
                for r in range(4):
                    a(f"v_mul_f32 v{d+r}, v{d+r}, v{rc}")
                a(f"v_cvt_pk_bf16_f32 v{o+2*s}, v{d}, v{d+1}")
                a(f"v_cvt_pk_bf16_f32 v{o+2*s+1}, v{d+2}, v{d+3}")
            a.ds(f"ds_write_b128 v6, v[{o}:{o+3}] offset:{(2*q+mt)*1024}")
    a.wait_lg0()
    a("s_barrier")
    OB, ACC = 108, 56
    ot = {}
    for i in range(36):
        ot[i] = a.ds(f"ds_read_b128 v[{OB+4*i}:{OB+4*i+3}], v2 offset:{i*1024}")
        if i == 11:
            break
    a("s_waitcnt vmcnt(0)")
    a.vm_done = a.vm
    nxt = 12
    for ks in range(18):
        a.wait(lg=ot[2 * ks + 1])
        for hf in range(2):
            for mt in range(2):
                d = ACC + 8 * hf + 4 * mt
                w = 4 * (2 * ks + hf)
                o = OB + 4 * (2 * ks + mt)
                c = "0" if ks == 0 else f"v[{d}:{d+3}]"
                a(f"v_mfma_f32_16x16x32_bf16 v[{d}:{d+3}], a[{w}:{w+3}], v[{o}:{o+3}], {c}")
                if nxt < 36 and mt == 0:
                    ot[nxt] = a.ds(f"ds_read_b128 v[{OB+4*nxt}:{OB+4*nxt+3}], v2 offset:{nxt*1024}")
                    nxt += 1
    a("s_cmp_lg_u32 s6, 0\ns_cbranch_scc1 L_k2_noh2")
    for ks in range(18):
        for mt in range(2):
            d = ACC + 16 + 4 * mt
            w = 144 + 4 * ks
            o = OB + 4 * (2 * ks + mt)
            c = "0" if ks == 0 else f"v[{d}:{d+3}]"
            a(f"v_mfma_f32_16x16x32_bf16 v[{d}:{d+3}], a[{w}:{w+3}], v[{o}:{o+3}], {c}")
    for mt in range(2):
        d = ACC + 16 + 4 * mt
        for j in range(2):
            a(f"v_accvgpr_read_b32 v{8+j}, a{224+2*mt+j}")
        for j in range(2):
            a(f"v_lshlrev_b32 v{10+2*j}, 16, v{8+j}\nv_and_b32 v{11+2*j}, 0xffff0000, v{8+j}")
        for r in range(4):
            a(f"v_add_f32 v{d+r}, v{d+r}, v{10+r}")
        a(f"v_cvt_pk_bf16_f32 v{d}, v{d}, v{d+1}\nv_cvt_pk_bf16_f32 v{d+1}, v{d+2}, v{d+3}")
        a(f"buffer_store_dwordx2 v[{d}:{d+1}], v2, s[36:39], s{23+mt} offen")
    a("L_k2_noh2:")
    a("s_nop 7")
    for mt in range(2):
        for j in range(4):
            a(f"v_accvgpr_read_b32 v{8+j}, a{216+4*mt+j}")
        for j in range(4):
            a(f"v_lshlrev_b32 v{12+2*j}, 16, v{8+j}\nv_and_b32 v{13+2*j}, 0xffff0000, v{8+j}")
        for hf in range(2):
            d = ACC + 8 * hf + 4 * mt
            for r in range(4):
                a(f"v_add_f32 v{12+4*hf+r}, v{d+r}, v{12+4*hf+r}")
        o = 20 + 4 * mt
        for j in range(4):
            a(f"v_cvt_pk_bf16_f32 v{o+j}, v{12+2*j}, v{13+2*j}")
        a(f"buffer_store_dwordx4 v[{o}:{o+3}], v2, s[36:39], s{21+mt} offen")
    finish(a, name, 4)
    return name, a, dict(nv=256 + 228, acc=256, ns=102), (256, 256, 36864)


def k3():
    a = Asm()
    name = "k3_kernel"
    start(a, name, 256)
    a("s_lshr_b32 s7, s2, 3\ns_and_b32 s3, s2, 7")
    a(f"s_mul_i32 s21, s7, 73728\ns_add_u32 s22, s21, {OFF_XB}")
    a(f"s_lshl_b32 s23, s3, 2\ns_add_u32 s23, s23, s6\ns_mul_i32 s23, s23, {324*1024}")
    if OFF_WFP:
        a(f"s_add_u32 s23, s23, {OFF_WFP}")
    a("s_waitcnt lgkmcnt(0)")
    srd(a, 12, "s4", "s5", "s22", 73728)
    srd(a, 8, "s4", "s5", "s23", 324 * 1024)
    xt = dma_x_tile(a, 12)
    D = 6
    BXV, ACC, RING = 12, 44, 140
    TMP = 212
    HB, STAT = 73728, 147456
    ring = {}
    a("s_mov_b32 s26, 0")

    def wload(n, t):
        r = RING + ((n % D) * 3 + t) * 4
        ring[(n, t)] = a.vmem(f"buffer_load_dwordx4 v[{r}:{r+3}], v2, s[8:11], s26 offen offset:{t*1024}")
        if t == 2:
            a("s_add_u32 s26, s26, 3072")
    for n in range(D):
        for t in range(3):
            wload(n, t)
    VX1, VS, VH0, VH1, VW0, VW1, VP0, VP1 = 3, 4, 5, 6, 7, 8, 9, 10
    a(f"v_add_u32 v{VX1}, 36864, v2")
    a(f"s_mul_i32 s20, s6, 18432\nv_add_u32 v{VS}, s20, v2")
    a(f"v_add_u32 v{VH0}, {HB}, v2\nv_add_u32 v{VH1}, {HB+36864}, v2")
    a(f"s_lshl_b32 s20, s6, 12\nv_add_u32 v{VW0}, s20, v{VH0}")
    a("s_lshr_b32 s24, s6, 1\ns_add_u32 s24, s24, 4\ns_and_b32 s25, s6, 1\ns_lshl_b32 s25, s25, 3")
    a(f"s_lshl_b32 s20, s24, 12\ns_add_u32 s20, s20, s25\nv_add_u32 v{VW1}, s20, v{VH0}")
    a(f"s_lshl_b32 s20, s6, 10\nv_add_u32 v{VP0}, s20, v2")
    a(f"s_lshl_b32 s20, s24, 10\ns_add_u32 s20, s20, s25\nv_add_u32 v{VP1}, s20, v2")
    a(f"s_mul_i32 s22, s3, {XF_BYTES}\ns_add_u32 s22, s22, s21\ns_add_u32 s22, s22, {OFF_PART}")
    srd(a, 16, "s4", "s5", "s22", 73728)
    for p in range(3):
        for mt in range(4):
            a(f"s_mov_b32 s{28+4*p+mt}, {mt*18432+p*6144}")
    ST, SUM, SQ = TMP, TMP + 8, TMP + 9
    CS = TMP + 10
    ST1 = TMP + 18
    PK = TMP + 26
    T0 = TMP + 38
    a(f"v_mov_b32 v{SUM}, 0\nv_mov_b32 v{SQ}, 0\ns_mov_b32 s27, 0x3f803f80")

    def breg(ks, mt):
        i = ks * 4 + mt
        return ar(4 * i, 4) if i < 64 else vr(BXV + 4 * (i - 64), 4)
    br = {}
    sr_ = {}

    def bread(ph, ks, mt):
        if ph == 0:
            base = "v2" if mt < 2 else f"v{VX1}"
            off = ((mt % 2) * 18 + ks) * 1024
        else:
            base = f"v{VH0}" if ks < 9 else f"v{VH1}"
            off = ((ks % 9) * 4 + mt) * 1024
        br[(ph, ks, mt)] = a.ds(f"ds_read_b128 {breg(ks,mt)}, {base} offset:{off}")

    def sread(ks):
        r = ST + (ks % 2) * 4
        sr_[ks] = a.ds(f"ds_read_b128 v[{r}:{r+3}], v{VS} offset:{ks*1024}")

    def silu_fill(st, p):
        out = []
        for mt in range(4):
            pk = PK + 6 * (mt % 2)
            for t in range(3):
                d = ACC + 48 * st + (t * 4 + mt) * 4
                tm = ST1 + 4 * ((mt * 3 + t) % 2)
                c1, sd = CS + 2 * mt, CS + 2 * mt + 1
                out += [f"v_mul_f32 v{tm+r}, v{d+r}, v{c1}" for r in range(4)]
                out += [f"v_exp_f32 v{tm+r}, v{tm+r}" for r in range(4)]
                out += [f"v_fma_f32 v{tm+r}, v{tm+r}, v{sd}, v{sd}" for r in range(4)]
                out += [f"v_rcp_f32 v{tm+r}, v{tm+r}" for r in range(4)]
                out += [f"v_mul_f32 v{tm+r}, v{d+r}, v{tm+r}" for r in range(4)]
                out += [f"v_cvt_pk_bf16_f32 v{pk+2*t}, v{tm}, v{tm+1}", f"v_cvt_pk_bf16_f32 v{pk+2*t+1}, v{tm+2}, v{tm+3}"]
                if t == 1:
                    out.append(("ds", f"ds_write_b128 v{VW0}, v[{pk}:{pk+3}] offset:{p*24576+mt*1024}"))
                if t == 2:
                    out.append(("ds", f"ds_write_b64 v{VW1}, v[{pk+4}:{pk+5}] offset:{p*24576+mt*1024}"))
        return out

    def store_fill(st, p):
        out = []
        for mt in range(4):
            pk = PK + 6 * (mt % 2)
            for t in range(3):
                d = ACC + 48 * st + (t * 4 + mt) * 4
                out += [f"v_cvt_pk_bf16_f32 v{pk+2*t}, v{d}, v{d+1}", f"v_cvt_pk_bf16_f32 v{pk+2*t+1}, v{d+2}, v{d+3}"]
                if t == 1:
                    out.append(("vm", f"buffer_store_dwordx4 v[{pk}:{pk+3}], v{VP0}, s[16:19], s{28+4*p+mt} offen"))
                if t == 2:
                    out.append(("vm", f"buffer_store_dwordx2 v[{pk+4}:{pk+5}], v{VP1}, s[16:19], s{28+4*p+mt} offen"))
        return out

    def emit(f):
        if isinstance(f, tuple):
            (a.ds if f[0] == "ds" else a.vmem)(f[1])
        else:
            a(f)

    def cost(f):
        if isinstance(f, tuple):
            return 1
        return 2 if f.startswith(("v_exp", "v_rcp")) else 1

    a.wait(vm=xt)
    a("s_barrier")
    for ks in range(2):
        for mt in range(4):
            bread(0, ks, mt)
    sread(0)
    fill = []
    for ps in range(6):
        st = ps % 2
        if ps in (1, 2, 3):
            fill = silu_fill(1 - st, ps - 1)
        elif ps in (4, 5):
            fill = store_fill(1 - st, ps - 4)
        fsteps = {0: 18, 1: 17, 2: 15, 3: 9, 4: 12, 5: 12}[ps]
        total = sum(cost(f) for f in fill)
        spent = 0
        for ks in range(18):
            n = ps * 18 + ks
            lg = None
            if ps == 0:
                lg = max(br[(0, ks, 3)], sr_[ks])
            elif ps == 3:
                lg = br[(1, ks, 3)]
            a.wait(vm=ring[(n, 2)], lg=lg)
            pre = []
            if ps == 0:
                if ks + 2 < 18:
                    pre += [lambda mt=mt: bread(0, ks + 2, mt) for mt in range(4)]
                if ks + 1 < 18:
                    pre.append(lambda: sread(ks + 1))
                r = ST + (ks % 2) * 4
                fill = []
                for j in range(4):
                    fill.append(f"v_dot2c_f32_bf16 v{SUM}, s27, v{r+j}")
                    fill.append(f"v_dot2c_f32_bf16 v{SQ}, v{r+j}, v{r+j}")
            elif ps == 2 and ks >= 16:
                if ks == 16:
                    assert not fill
                    a.wait_lg0()
                    a("s_barrier")
                pre += [lambda mt=mt: bread(1, ks - 16, mt) for mt in range(4)]
            elif ps == 3 and ks + 2 < 18:
                if ks == 10:
                    assert not fill
                    a.wait_lg0()
                    a("s_barrier")
                pre += [lambda mt=mt: bread(1, ks + 2, mt) for mt in range(4)]
            i = 0
            for t in range(3):
                w = RING + ((n % D) * 3 + t) * 4
                for mt in range(4):
                    d = ACC + 48 * st + (t * 4 + mt) * 4
                    c = "0" if ks == 0 else f"v[{d}:{d+3}]"
                    a(f"v_mfma_f32_16x16x32_bf16 v[{d}:{d+3}], v[{w}:{w+3}], {breg(ks,mt)}, {c}")
                    i += 1
                    if pre:
                        pre.pop(0)()
                    if ps == 0:
                        if i > 4 and fill:
                            a(fill.pop(0))
                    elif not (ks == 0 and i < 3):
                        target = total * (ks * 12 + i) / (fsteps * 12)
                        while fill and spent < target:
                            f = fill.pop(0)
                            spent += cost(f)
                            emit(f)
                if n + D < 108:
                    wload(n + D, t)
            assert not pre
        assert not fill, (ps, len(fill))
        if ps == 0:
            ln_finalize(a, SUM, SQ, T0)
            a(f"v_mul_f32 v{SQ}, v{SQ}, v{SUM}")
            a(f"v_mul_f32 v{SUM}, {NLOG2E}, v{SUM}")
            a(f"v_and_b32 v{T0}, 15, v1\nv_lshlrev_b32 v{T0}, 3, v{T0}\nv_add_u32 v{T0}, {STAT}, v{T0}")
            a(f"s_lshl_b32 s20, s6, 7\nv_add_u32 v{T0+1}, s20, v{T0}")
            a.ds(f"ds_write_b64 v{T0+1}, v[{SUM}:{SUM+1}]")
            a.wait_lg0()
            a("s_barrier")
            for mt in range(4):
                a.ds(f"ds_read_b64 v[{CS+2*mt}:{CS+2*mt+1}], v{T0} offset:{128*mt}")
            a.wait_lg0()
    for f in store_fill(1, 2):
        emit(f)
    finish(a, name, 4)
    return name, a, dict(nv=512, acc=256, ns=102), (256, 256, 147456 + 512)


def k4(final):
    a = Asm()
    name = "k4f_kernel" if final else "k4_kernel"
    start(a, name, 256)
    if final:
        a("s_load_dwordx2 s[24:25], s[0:1], 48")
    a("s_mul_i32 s7, s2, 9\ns_add_u32 s7, s7, s6\ns_lshl_b32 s7, s7, 10")
    a("v_add_u32 v3, s7, v2")
    a("s_waitcnt lgkmcnt(0)")
    srd(a, 8, "s4", "s5", OFF_PART, 8 * XF_BYTES)
    srd(a, 12, "s4", "s5", OFF_XB, XF_BYTES)
    tk = []
    tk.append(a.vmem("buffer_load_dwordx4 v[8:11], v3, s[12:15], 0 offen"))
    for f in range(8):
        a(f"s_mov_b32 s20, {f*XF_BYTES}")
        tk.append(a.vmem(f"buffer_load_dwordx4 v[{12+4*f}:{15+4*f}], v3, s[8:11], s20 offen"))
    if final:
        srd(a, 16, "s24", "s25", 0, XF_BYTES)
        a("s_lshr_b32 s21, s2, 1\ns_mul_i32 s21, s21, 18432")
        a("s_and_b32 s22, s2, 1\ns_mul_i32 s22, s22, 9\ns_add_u32 s22, s22, s6\ns_lshl_b32 s22, s22, 6\ns_add_u32 s21, s21, s22")
        a("v_and_b32 v4, 15, v1\nv_mul_u32_u24 v4, 1152, v4\nv_lshrrev_b32 v5, 4, v1\nv_lshl_add_u32 v4, v5, 4, v4")
        a("v_add_u32 v3, s21, v4")
    else:
        srd(a, 16, "s4", "s5", OFF_XA, XF_BYTES)
        srd(a, 28, "s4", "s5", OFF_KV, 49152)
        for j in range(4):
            a(f"v_mov_b32 v{60+j}, 0")
        a.vmem("buffer_store_dwordx4 v[60:63], v3, s[28:31], 0 offen")
    S = 44
    for i in range(9):
        a.wait(vm=tk[i])
        b = 8 + 4 * i
        for j in range(4):
            if i == 0:
                a(f"v_lshlrev_b32 v{S+2*j}, 16, v{b+j}\nv_and_b32 v{S+2*j+1}, 0xffff0000, v{b+j}")
            else:
                a(f"v_lshlrev_b32 v{52+2*j}, 16, v{b+j}\nv_and_b32 v{53+2*j}, 0xffff0000, v{b+j}")
        if i:
            for j in range(8):
                a(f"v_add_f32 v{S+j}, v{S+j}, v{52+j}")
    for j in range(4):
        a(f"v_cvt_pk_bf16_f32 v{S+j}, v{S+2*j}, v{S+2*j+1}")
    a.vmem(f"buffer_store_dwordx4 v[{S}:{S+3}], v3, s[16:19], 0 offen")
    finish(a, name, 9)
    return name, a, dict(nv=64, acc=64, ns=102 if STAMP else 40), (256, 576, 0)


HEADER = """; interleave_layers: 2 x (LN -> linear attention -> residual, LN -> SiLU FFN -> residual), S=2048 D=576 F=4608 H=32
"""


def build(order=None, delay=False):
    ks = {}
    for f in (k0, k1, k2, k3, lambda: k4(False), lambda: k4(True)):
        name, a, kd, geo = f()
        ks[name] = (a, kd, geo)
    if order is None:
        order = ["k0_kernel", "k1_kernel", "k2_kernel", "k3_kernel", "k4_kernel",
                 "k1_kernel", "k2_kernel", "k3_kernel", "k4f_kernel"]
    s = HEADER
    if delay:
        s += "; @launch kernel=delay_kernel grid=(256,1,1) block=(64,1,1) lds=0\n"
    for n in order:
        g, b, l = ks[n][2]
        s += f"; @launch kernel={n} grid=({g},1,1) block=({b},1,1) lds={l}\n"
    s += '.amdgcn_target "amdgcn-amd-amdhsa--gfx950"\n.text\n'
    kd = '.section .rodata,"a"\n'
    if delay:
        s += ".globl delay_kernel\n.p2align 8\n.type delay_kernel,@function\ndelay_kernel:\ns_mov_b32 s4, 3000\nL_dl:\ns_sleep 4\ns_sub_u32 s4, s4, 1\ns_cmp_lg_u32 s4, 0\ns_cbranch_scc1 L_dl\ns_endpgm\n"
        kd += KD.format(name="delay_kernel", nv=8, acc=8, ns=16)
    for n, (a, d, geo) in ks.items():
        if n not in order:
            continue
        s += a.text()
        kd += KD.format(name=n, **d)
        sys.stderr.write(f"{n}: {len(a.lines)} lines, {a.nops} nops inserted\n")
    return s + kd


if __name__ == "__main__":
    out = sys.argv[1]
    if len(sys.argv) > 2 and sys.argv[2] == "stamp":
        STAMP = True
        open(out, "w").write(build(delay=True))
    else:
        open(out, "w").write(build())
```

```python
import sys, os
sys.path.insert(0, os.path.dirname(os.path.abspath(__file__)))
from asm import *

OFF_WFP = 0x0
OFF_WQKVP = 0xA20000
OFF_WOP = 0xC60000
OFF_XA = 0xD10000
OFF_XB = 0xF50000
OFF_PQM = 0x1190000
OFF_QREM = 0x1390000
OFF_KV = 0x13D0000
OFF_PART = 0x1400000
OFF_STAMP = 0x8000000
XF_BYTES = 0x240000
LOG2E = 0x3FB8AA3B
NLOG2E = 0xBFB8AA3B
INV576 = 0x3AE38E39
EPS_LN = 0x3727C5AC
EPS_6 = 0x358637BD

STAMP = False


def start(a, name, nwg):
    a(f".globl {name}\n.p2align 8\n.type {name},@function\n{name}:")
    a(f"s_cmp_ge_u32 s2, {nwg}\ns_cbranch_scc1 L_{name}_end")
    if STAMP:
        a("s_memrealtime s[92:93]\ns_memtime s[94:95]\ns_load_dwordx2 s[90:91], s[0:1], 56")
        for i in range(24):
            a(f"s_mov_b32 s{60+i}, 0")
    a("s_load_dwordx2 s[4:5], s[0:1], 64")
    a("v_lshrrev_b32 v1, 6, v0")
    a("v_readfirstlane_b32 s6, v1")
    a("v_and_b32 v1, 63, v0")
    a("v_lshlrev_b32 v2, 4, v1")


def stamp(a, i):
    if STAMP:
        a(f"s_memtime s[{60+2*i}:{61+2*i}]")


def finish(a, name, nwaves):
    if STAMP:
        a("s_waitcnt vmcnt(0) lgkmcnt(0)")
        a("s_memrealtime s[96:97]\ns_memtime s[98:99]")
        a("s_lshr_b32 s90, s90, 9\ns_and_b32 s90, s90, 31\ns_lshl_b32 s90, s90, 19")
        a(f"s_mul_i32 s91, s2, {nwaves}\ns_add_u32 s91, s91, s6\ns_lshl_b32 s91, s91, 7")
        a(f"s_add_u32 s90, s90, s91\ns_add_u32 s90, s90, {OFF_STAMP}")
        a("s_add_u32 s90, s4, s90\ns_addc_u32 s91, s5, 0")
        a("s_waitcnt lgkmcnt(0)")
        a("s_mov_b64 exec, -1")
        for i in range(8):
            a(f"v_mov_b32 v{4+i}, s{92+i}")
        a("v_mov_b32 v3, 0")
        a("global_store_dwordx4 v3, v[4:7], s[90:91]")
        a("global_store_dwordx4 v3, v[8:11], s[90:91] offset:16")
        for q in range(6):
            for i in range(4):
                a(f"v_mov_b32 v{12+4*q+i}, s{60+4*q+i}")
            a(f"global_store_dwordx4 v3, v[{12+4*q}:{15+4*q}], s[90:91] offset:{32+16*q}")
    a(f"L_{name}_end:\ns_endpgm")


def srd(a, d, lo, hi, off, size):
    a(f"s_add_u32 s{d}, {lo}, {off}")
    a(f"s_addc_u32 s{d+1}, {hi}, 0")
    a(f"s_and_b32 s{d+1}, s{d+1}, 0xffff")
    a(f"s_mov_b32 s{d+2}, {size}")
    a(f"s_mov_b32 s{d+3}, 0x20000")


def xg_sum(a, x, t):
    a(f"v_mov_b32 v{t}, v{x}")
    a(f"v_permlane32_swap_b32 v{x}, v{t}")
    a(f"v_add_f32 v{x}, v{x}, v{t}")
    a(f"v_mov_b32 v{t}, v{x}")
    a(f"v_permlane16_swap_b32 v{x}, v{t}")
    a(f"v_add_f32 v{x}, v{x}, v{t}")


def w2_frow(hk, half):
    ps, u = divmod(hk, 6)
    if u < 4:
        return 144 * u + 48 * ps + 16 * half
    return 144 * (2 * (u - 4) + half) + 48 * ps + 32


def k0():
    a = Asm()
    name = "k0_kernel"
    start(a, name, 224)
    a("s_load_dwordx4 s[24:27], s[0:1], 0")
    a("s_load_dwordx2 s[28:29], s[0:1], 16")
    a("s_load_dwordx4 s[32:35], s[0:1], 32")
    a("v_and_b32 v3, 15, v1")
    a("v_lshrrev_b32 v4, 4, v1")
    a("s_waitcnt lgkmcnt(0)")
    LV = 16

    def gather(rowoff, voff):
        for ks in range(18):
            for t in range(8):
                o = rowoff(ks, t)
                a(f"s_mov_b32 s20, {o}")
                a(f"buffer_load_ushort v{LV+ks*8+t}, {voff(ks)}, s[8:11], s20 offen")

    def div9(src):
        a(f"s_mul_i32 s21, {src}, 7282\ns_lshr_b32 s21, s21, 16")
        a(f"s_mul_i32 s3, s21, 9\ns_sub_u32 s3, {src}, s3")
        a("s_mul_i32 s22, s3, 11\ns_lshr_b32 s22, s22, 5")
        a("s_mul_i32 s23, s22, 3\ns_sub_u32 s23, s3, s23")

    def ncol(p, hf):
        a("v_lshrrev_b32 v5, 2, v3\nv_lshlrev_b32 v5, 3, v5\nv_and_b32 v6, 3, v3\nv_add_u32 v5, v5, v6")
        a(f"s_lshl_b32 s36, {p}, 5\ns_lshl_b32 s37, {hf}, 2\ns_add_u32 s36, s36, s37")
        a("v_add_u32 v5, s36, v5\nv_lshlrev_b32 v5, 1, v5")

    a("s_cmp_ge_u32 s2, 72\ns_cbranch_scc1 L_k0_w2")
    a("s_lshl_b32 s7, s2, 2\ns_add_u32 s7, s7, s6")
    div9("s7")
    srd(a, 8, "s32", "s33", 0, 576 * 4608 * 2)
    a("s_mul_i32 s16, s21, 324\ns_mul_i32 s17, s22, 54\ns_add_u32 s16, s16, s17\ns_add_u32 s16, s16, s23")
    a(f"s_lshl_b32 s16, s16, 10\ns_add_u32 s16, s16, {OFF_WFP}")
    a(f"s_mov_b32 s17, 3072\ns_mov_b32 s18, {INV576}")
    a(f"v_mul_u32_u24 v5, {8*9216}, v4")
    a("s_lshl_b32 s7, s7, 5\nv_lshlrev_b32 v6, 1, v3\nv_add_u32 v5, v5, v6\nv_add_u32 v5, s7, v5")
    gather(lambda ks, t: (32 * ks + t) * 9216, lambda ks: "v5")
    a("s_branch L_k0_tail")
    a("L_k0_w2:")
    a("s_cmp_ge_u32 s2, 144\ns_cbranch_scc1 L_k0_qkv")
    a("s_sub_u32 s7, s2, 72\ns_lshl_b32 s7, s7, 2\ns_add_u32 s7, s7, s6")
    div9("s7")
    srd(a, 8, "s34", "s35", 0, 576 * 4608 * 2)
    a("s_mul_i32 s16, s21, 324\ns_mul_i32 s17, s22, 54\ns_add_u32 s16, s16, s17\ns_add_u32 s16, s16, s23")
    a(f"s_add_u32 s16, s16, 162\ns_lshl_b32 s16, s16, 10\ns_add_u32 s16, s16, {OFF_WFP}")
    a("s_mov_b32 s17, 3072\ns_mov_b32 s18, 0")
    a("s_and_b32 s38, s21, 3")
    a("s_lshr_b32 s39, s38, 1\ns_add_u32 s39, s39, 4\ns_and_b32 s40, s38, 1")
    a("s_cmp_eq_u32 s23, 2\ns_cselect_b32 s38, s39, s38\ns_cselect_b32 s40, s40, s23")
    a("s_mul_i32 s39, s22, 6\ns_add_u32 s38, s38, s39")
    ncol("s38", "s40")
    a(f"v_mul_u32_u24 v6, {4*1152}, v4\nv_add_u32 v5, v5, v6")
    a(f"s_lshr_b32 s39, s21, 2\ns_mul_i32 s39, s39, {576*1152}\nv_add_u32 v5, s39, v5")
    gather(lambda ks, t: (w2_frow(ks, t >> 2) + (t & 3)) * 1152, lambda ks: "v5")
    a("s_branch L_k0_tail")
    a("L_k0_qkv:")
    a("s_cmp_ge_u32 s2, 176\ns_cbranch_scc1 L_k0_wo")
    a("s_sub_u32 s7, s2, 144")
    srd(a, 8, "s26", "s27", 0, 576 * 1728 * 2)
    a(f"s_mul_i32 s16, s7, 73728\ns_lshl_b32 s17, s6, 10\ns_add_u32 s16, s16, s17\ns_add_u32 s16, s16, {OFF_WQKVP}")
    a(f"s_mov_b32 s17, 4096\ns_mov_b32 s18, {INV576}")
    a("s_add_u32 s38, s6, 1\ns_and_b32 s38, s38, 3\ns_mul_i32 s38, s38, 576")
    a("v_add_u32 v5, s38, v3")
    a("s_and_b32 s39, s7, 3\ns_add_u32 s40, s39, 1\ns_and_b32 s40, s40, 3")
    a("s_lshl_b32 s39, s39, 1\ns_lshl_b32 s40, s40, 1\ns_add_u32 s41, s40, 1")
    a("v_lshrrev_b32 v6, 1, v3\nv_and_b32 v7, 1, v3")
    a("v_mov_b32 v8, 0x100000")
    a("v_add_u32 v9, 1168, v7\nv_cmp_eq_u32 vcc, s39, v6\nv_cndmask_b32 v8, v8, v9, vcc")
    a("v_add_u32 v9, 592, v7\nv_cmp_eq_u32 vcc, s40, v6\nv_cndmask_b32 v8, v8, v9, vcc")
    a("v_add_u32 v9, 16, v7\nv_cmp_eq_u32 vcc, s41, v6\nv_cndmask_b32 v8, v8, v9, vcc")
    a("s_cmp_eq_u32 s6, 2\ns_cselect_b64 vcc, -1, 0")
    a("v_cndmask_b32 v5, v5, v8, vcc")
    a("s_mul_i32 s38, s7, 18\nv_add_u32 v5, s38, v5\nv_lshlrev_b32 v5, 1, v5")
    a(f"v_mul_u32_u24 v6, {8*3456}, v4\nv_add_u32 v5, v5, v6")
    gather(lambda ks, t: (32 * ks + t) * 3456, lambda ks: "v5")
    a("s_branch L_k0_tail")
    a("L_k0_wo:")
    a("s_cmp_ge_u32 s2, 185\ns_cbranch_scc1 L_k0_x")
    a("s_sub_u32 s7, s2, 176\ns_lshl_b32 s7, s7, 2\ns_add_u32 s7, s7, s6")
    div9("s7")
    srd(a, 8, "s28", "s29", 0, 576 * 576 * 2)
    a("s_lshr_b32 s38, s3, 1\ns_and_b32 s40, s3, 1")
    a("s_mul_i32 s16, s38, 36\ns_add_u32 s16, s16, s40")
    a("s_mul_i32 s39, s21, 9\ns_add_u32 s39, s39, 1\ns_lshr_b32 s39, s39, 1\ns_add_u32 s38, s38, s39")
    a("s_lshr_b32 s39, s21, 1\ns_mul_i32 s39, s39, 9\ns_add_u32 s39, s39, 4\ns_and_b32 s41, s21, 1")
    a("s_cmp_eq_u32 s3, 8\ns_cselect_b32 s38, s39, s38\ns_cselect_b32 s40, s41, s40\ns_cselect_b32 s17, 1024, 2048"
      .replace("s_cselect_b32 s17, 1024, 2048", "s_cselect_b32 s17, 1, 2"))
    a("s_lshl_b32 s17, s17, 10")
    a("s_mul_i32 s39, s21, 162\ns_add_u32 s16, s16, s39")
    a(f"s_lshl_b32 s16, s16, 10\ns_add_u32 s16, s16, {OFF_WOP}\ns_mov_b32 s18, 0")
    ncol("s38", "s40")
    a(f"v_mul_u32_u24 v6, {18*1152}, v4\nv_add_u32 v7, v5, v6")
    a(f"v_mul_u32_u24 v6, {4*1152}, v4\nv_add_u32 v5, v5, v6")

    def wo_row(ks, t):
        if ks < 16:
            return (18 * (2 * ks + (t >> 2)) + (t & 3)) * 1152
        return (18 * (16 * (ks - 16) + 4 * (t >> 1)) + 16 + (t & 1)) * 1152
    gather(wo_row, lambda ks: "v5" if ks < 16 else "v7")
    a("L_k0_tail:")
    srd(a, 12, "s4", "s5", "s16", 18 * 4096)
    a("s_waitcnt vmcnt(0)")
    for i in range(144):
        a(f"v_lshlrev_b32 v{LV+i}, 16, v{LV+i}")
    for j in range(4):
        a(f"v_mov_b32 v{8+j}, v{LV+j}")
    for i in range(4, 144):
        a(f"v_add_f32 v{8+(i&3)}, v{8+(i&3)}, v{LV+i}")
    a("v_add_f32 v8, v8, v9\nv_add_f32 v10, v10, v11\nv_add_f32 v8, v8, v10")
    xg_sum(a, 8, 9)
    a("v_mul_f32 v8, s18, v8")
    for i in range(144):
        a(f"v_sub_f32 v{LV+i}, v{LV+i}, v8")
    a("s_mov_b32 s20, 0")
    for ks in range(18):
        b = LV + ks * 8
        for j in range(4):
            a(f"v_cvt_pk_bf16_f32 v{b+j}, v{b+2*j}, v{b+2*j+1}")
        a(f"buffer_store_dwordx4 v[{b}:{b+3}], v2, s[12:15], s20 offen")
        a("s_add_u32 s20, s20, s17")
    a("s_branch L_k0_done")
    a("L_k0_x:")
    a("s_cmp_lt_u32 s2, 192\ns_cbranch_scc1 L_k0_zero")
    a("s_and_b32 s7, s2, 7\ns_lshl_b32 s7, s7, 4\ns_sub_u32 s3, s2, 192\ns_lshr_b32 s3, s3, 3\ns_lshl_b32 s3, s3, 2")
    a("s_add_u32 s7, s7, s3\ns_add_u32 s7, s7, s6\ns_mul_i32 s7, s7, 18432")
    srd(a, 8, "s24", "s25", "s7", 18432)
    a(f"s_add_u32 s7, s7, {OFF_XA}")
    srd(a, 12, "s4", "s5", "s7", 18432)
    a("v_mul_u32_u24 v5, 1152, v3\nv_lshlrev_b32 v6, 4, v4\nv_add_u32 v5, v5, v6")
    for ks in range(18):
        a(f"buffer_load_dwordx4 v[{LV+4*ks}:{LV+4*ks+3}], v5, s[8:11], 0 offen offset:{64*ks}")
    for ks in range(18):
        a(f"s_waitcnt vmcnt(17)")
        a(f"s_mov_b32 s20, {1024*ks}")
        a(f"buffer_store_dwordx4 v[{LV+4*ks}:{LV+4*ks+3}], v2, s[12:15], s20 offen")
    a("s_branch L_k0_done")
    a("L_k0_zero:")
    a("s_cmp_lg_u32 s2, 185\ns_cbranch_scc1 L_k0_done")
    srd(a, 12, "s4", "s5", OFF_KV, 49152)
    a("v_lshlrev_b32 v5, 4, v0")
    for j in range(4):
        a(f"v_mov_b32 v{8+j}, 0")
    for j in range(12):
        a(f"s_mov_b32 s20, {4096*j}")
        a("buffer_store_dwordx4 v[8:11], v5, s[12:15], s20 offen")
    a("L_k0_done:")
    finish(a, name, 4)
    return name, a, dict(nv=160, acc=160, ns=102), (224, 256, 0)


def rowmap(a):
    a("s_and_b32 s7, s2, 7\ns_lshl_b32 s7, s7, 2\ns_lshr_b32 s3, s2, 3\ns_and_b32 s20, s3, 3\ns_add_u32 s7, s7, s20\ns_lshr_b32 s3, s3, 2")


def dma_x_tile(a, srdx):
    a("s_mul_i32 s20, s6, 18432")
    last = None
    for i in range(18):
        if i % 4 == 0:
            if i:
                a("s_add_u32 s20, s20, 4096")
            a("s_mov_b32 m0, s20")
        last = a.vmem(f"buffer_load_dwordx4 v2, s[{srdx}:{srdx+3}], s20 offen offset:{(i%4)*1024} lds")
    return last


def ln_finalize(a, s, q, t):
    xg_sum(a, s, t)
    xg_sum(a, q, t)
    a(f"v_mul_f32 v{s}, {INV576}, v{s}")
    a(f"v_mul_f32 v{q}, {INV576}, v{q}")
    a(f"v_fma_f32 v{q}, -v{s}, v{s}, v{q}")
    a(f"v_max_f32 v{q}, 0, v{q}")
    a(f"v_add_f32 v{q}, {EPS_LN}, v{q}")
    a(f"v_rsq_f32 v{s}, v{q}")


def phi_ops(src, rs, c2, dst, t):
    return [f"v_min_f32 v{t}, 0, v{src}",
            f"v_mul_f32 v{t}, v{t}, v{c2}",
            f"v_exp_f32 v{t}, v{t}",
            f"v_max_f32 v{dst}, 0, v{src}",
            f"v_add_f32 v{t}, {EPS_6}, v{t}",
            f"v_fma_f32 v{dst}, v{dst}, v{rs}, v{t}"]


def interleave(lists):
    out = []
    n = max(len(l) for l in lists)
    for i in range(n):
        for l in lists:
            if i < len(l):
                out.append(l[i])
    return out


def k1():
    a = Asm()
    name = "k1_kernel"
    start(a, name, 256)
    rowmap(a)
    a("s_lshl_b32 s21, s3, 2\ns_add_u32 s21, s21, s6")
    a(f"s_mul_i32 s22, s7, 73728\ns_add_u32 s22, s22, {OFF_XA}")
    a(f"s_mul_i32 s23, s21, 73728\ns_add_u32 s23, s23, {OFF_WQKVP}")
    a("s_waitcnt lgkmcnt(0)")
    srd(a, 12, "s4", "s5", "s22", 73728)
    srd(a, 8, "s4", "s5", "s23", 73728)
    xt = dma_x_tile(a, 12)
    D = 8
    ring = {}

    def wload(ks):
        a(f"s_mov_b32 s20, {ks*4096}")
        for t in range(4):
            r = ((ks % D) * 4 + t) * 4
            ring[(ks, t)] = a.vmem(f"buffer_load_dwordx4 a[{r}:{r+3}], v2, s[8:11], s20 offen offset:{t*1024}")
    for ks in range(D):
        wload(ks)
    XB, ACC, ST, SUM, SQ = 8, 56, 120, 128, 129
    VX0, VX1, VS = 3, 4, 5
    STAT = 73728
    a(f"v_add_u32 v{VX1}, 36864, v2")
    a(f"s_mul_i32 s20, s6, 18432\nv_add_u32 v{VS}, s20, v2")
    a(f"v_mov_b32 v{SUM}, 0\nv_mov_b32 v{SQ}, 0\ns_mov_b32 s24, 0x3f803f80")
    a(f"s_lshl_b32 s22, s7, 16\ns_add_u32 s22, s22, {OFF_PQM}")
    srd(a, 16, "s4", "s5", "s22", 65536)
    a(f"s_lshl_b32 s22, s7, 13\ns_add_u32 s22, s22, {OFF_QREM}")
    srd(a, 28, "s4", "s5", "s22", 8192)
    a(f"s_mul_i32 s22, s3, 6144\ns_add_u32 s22, s22, {OFF_KV}")
    srd(a, 32, "s4", "s5", "s22", 6144)
    stamp(a, 0)
    a.wait(vm=xt)
    a("s_barrier")
    stamp(a, 1)
    xr = {}
    sr_ = {}

    def xread(ks, mt):
        base = "v2" if mt < 2 else f"v{VX1}"
        r = XB + (ks % 3) * 16 + mt * 4
        xr[(ks, mt)] = a.ds(f"ds_read_b128 v[{r}:{r+3}], {base} offset:{((mt%2)*18+ks)*1024}")

    def sread(ks):
        r = ST + (ks % 2) * 4
        sr_[ks] = a.ds(f"ds_read_b128 v[{r}:{r+3}], v{VS} offset:{ks*1024}")
    for ks in range(2):
        for mt in range(4):
            xread(ks, mt)
    sread(0)
    for ks in range(18):
        a.wait(vm=ring[(ks, 3)], lg=max(xr[(ks, 3)], sr_[ks]))
        fill = []
        r = ST + (ks % 2) * 4
        for j in range(4):
            fill.append(f"v_dot2c_f32_bf16 v{SUM}, s24, v{r+j}")
            fill.append(f"v_dot2c_f32_bf16 v{SQ}, v{r+j}, v{r+j}")
        n = 0
        for t in range(4):
            w = ((ks % D) * 4 + t) * 4
            for mt in range(4):
                x = XB + (ks % 3) * 16 + mt * 4
                d = ACC + t * 16 + mt * 4
                c = "0" if ks == 0 else f"v[{d}:{d+3}]"
                if t < 3:
                    a(f"v_mfma_f32_16x16x32_bf16 v[{d}:{d+3}], v[{x}:{x+3}], a[{w}:{w+3}], {c}")
                else:
                    a(f"v_mfma_f32_16x16x32_bf16 v[{d}:{d+3}], a[{w}:{w+3}], v[{x}:{x+3}], {c}")
                if n < 4 and ks + 2 < 18:
                    xread(ks + 2, n)
                elif n == 4 and ks + 1 < 18:
                    sread(ks + 1)
                elif n >= 5 and fill:
                    a(fill.pop(0))
                n += 1
        assert not fill
        if ks + D < 18:
            wload(ks + D)
    stamp(a, 2)
    T0 = 130
    ln_finalize(a, SUM, SQ, T0)
    a(f"v_and_b32 v{VX0}, 15, v1\nv_lshrrev_b32 v{VX1}, 4, v1")
    a(f"s_lshl_b32 s20, s6, 6\ns_add_u32 s20, s20, {STAT}")
    a(f"v_lshl_add_u32 v{T0}, v{VX0}, 2, s20")
    a.ds(f"ds_write_b32 v{T0}, v{SUM}")
    a(f"v_lshlrev_b32 v{T0+1}, 2, v{VX0}\nv_add_u32 v{T0+1}, {STAT}, v{T0+1}")
    a(f"v_lshlrev_b32 v{T0+2}, 4, v{VX1}\nv_add_u32 v{T0+2}, {STAT}, v{T0+2}")
    a.wait_lg0()
    a("s_barrier")
    RS2, C2, RS1, C1 = 8, 24, 40, 44
    for mt in range(4):
        a.ds(f"ds_read_b128 v[{RS2+4*mt}:{RS2+4*mt+3}], v{T0+2} offset:{64*mt}")
    for mt in range(4):
        a.ds(f"ds_read_b32 v{RS1+mt}, v{T0+1} offset:{64*mt}")
    a("s_add_u32 s25, s6, 1\ns_and_b32 s25, s25, 3")
    a("s_lshl_b32 s20, s25, 4\ns_mov_b64 s[36:37], 0xffff\ns_lshl_b64 s[36:37], s[36:37], s20")
    a("s_mov_b32 s38, 0x000f000f\ns_mov_b32 s39, 0x000f000f\ns_lshl_b32 s20, s6, 2\ns_lshl_b64 s[38:39], s[38:39], s20")
    a("s_mov_b32 s40, 0x00030003\ns_mov_b32 s41, 0x00030003\ns_lshl_b64 s[40:41], s[40:41], s20")
    a("s_and_b64 s[42:43], s[36:37], s[38:39]")
    SEL = 134
    a(f"v_lshlrev_b32 v{T0}, 2, v{VX1}\nv_sub_u32 v{T0}, v{VX0}, v{T0}")
    for j in (0, 1, 4, 5, 2, 3):
        a(f"v_mov_b32 v{SEL+j}, 0")
    a(f"v_mov_b32 v{T0+1}, 0x3f80\nv_mov_b32 v{T0+2}, 0x3f800000")
    for d in range(4):
        a(f"v_cmp_eq_u32 vcc, {d}, v{T0}")
        a(f"v_cndmask_b32 v{SEL+2+(d>>1)}, v{SEL+2+(d>>1)}, v{T0+1+(d&1)}, vcc")
    OA, OB, OQ, OR_ = 48, 49, 50, 51
    a(f"v_lshlrev_b32 v{OA}, 2, v1")
    a(f"v_and_b32 v{OB}, 3, v{VX0}\nv_lshl_add_u32 v{OB}, v{VX1}, 2, v{OB}\nv_lshlrev_b32 v{OB}, 2, v{OB}")
    a(f"s_lshl_b32 s20, s6, 6\nv_add_u32 v{OB}, s20, v{OB}")
    a(f"s_lshr_b32 s20, s21, 1\ns_lshl_b32 s20, s20, 10\ns_and_b32 s22, s21, 1\ns_lshl_b32 s22, s22, 3\ns_add_u32 s20, s20, s22")
    a(f"v_add_u32 v{OQ}, s20, v2")
    a(f"s_lshr_b32 s20, s3, 1\ns_lshl_b32 s20, s20, 9\ns_and_b32 s22, s3, 1\ns_lshl_b32 s22, s22, 2\ns_add_u32 s20, s20, s22")
    a(f"v_lshl_add_u32 v{OR_}, v1, 3, s20")
    a.wait_lg0()
    for i in range(16):
        a(f"v_mul_f32 v{C2+i}, {LOG2E}, v{RS2+i}")
    for i in range(4):
        a(f"v_mul_f32 v{C1+i}, {LOG2E}, v{RS1+i}")
    KA, VA, RA, QA = ACC, ACC + 16, ACC + 32, ACC + 48
    TT = 140
    for mt in range(4):
        for l in interleave([phi_ops(KA + 4 * mt + r, RS2 + 4 * mt + r, C2 + 4 * mt + r, KA + 4 * mt + r, TT + r) for r in range(4)]):
            a(l)
    for i in range(16):
        a(f"v_mul_f32 v{VA+i}, v{VA+i}, v{RS2+i}")
    for mt in range(4):
        for r in range(4):
            a(f"v_mul_f32 v{TT+4+r}, v{RA+4*mt+r}, v{RS2+4*mt+r}")
        for l in interleave([phi_ops(RA + 4 * mt + r, RS2 + 4 * mt + r, C2 + 4 * mt + r, RA + 4 * mt + r, TT + r) for r in range(4)]):
            a(l)
        for r in range(4):
            a(f"v_cndmask_b32 v{RA+4*mt+r}, v{RA+4*mt+r}, v{TT+4+r}, s[40:41]")
    KF, VF, RF = 148, 156, 164
    for (src, dst) in ((KA, KF), (VA, VF), (RA, RF)):
        for i in range(8):
            a(f"v_cvt_pk_bf16_f32 v{dst+i}, v{src+2*i}, v{src+2*i+1}")
    MM, RM, MR, RR, DT = 172, 176, 180, 184, 188
    for s in range(2):
        for (d, x, y) in ((MM, KF, VF), (MR, KF, RF), (RM, RF, VF), (RR, RF, RF)):
            c = "0" if s == 0 else f"v[{d}:{d+3}]"
            a(f"v_mfma_f32_16x16x32_bf16 v[{d}:{d+3}], v[{x+4*s}:{x+4*s+3}], v[{y+4*s}:{y+4*s+3}], {c}")
    for mt in range(4):
        sel = SEL + 2 if mt % 2 == 0 else SEL
        x = RF + 4 * (mt >> 1)
        a(f"v_mfma_f32_16x16x32_bf16 v[{DT+4*mt}:{DT+4*mt+3}], v[{x}:{x+3}], v[{sel}:{sel+3}], 0")
    stamp(a, 3)
    a("s_lshl_b32 s20, s6, 10")
    for r in range(4):
        a.vmem(f"buffer_atomic_add_f32 v{MM+r}, v{OA}, s[32:35], s20 offen offset:{r*256}")
    a("s_mov_b32 s20, 4096")
    a("s_mov_b64 exec, s[38:39]")
    for r in range(4):
        a.vmem(f"buffer_atomic_add_f32 v{MR+r}, v{OB}, s[32:35], s20 offen offset:{r*256}")
    a("s_mov_b64 exec, s[42:43]")
    for r in range(2):
        a.vmem(f"buffer_atomic_add_f32 v{RR+r}, v{OA}, s[32:35], s20 offen offset:{1536+r*256}")
    a("s_mov_b64 exec, s[36:37]")
    for r in range(2):
        a.vmem(f"buffer_atomic_add_f32 v{RM+r}, v{OA}, s[32:35], s20 offen offset:{1024+r*256}")
    for mt in range(4):
        a(f"v_cvt_pk_bf16_f32 v{DT+4*mt}, v{DT+4*mt+2}, v{DT+4*mt+3}")
        a(f"s_mov_b32 s20, {mt*2048}")
        a.vmem(f"buffer_store_dword v{DT+4*mt}, v{OR_}, s[28:31], s20 offen")
    a("s_mov_b64 exec, -1")
    for mt in range(4):
        for l in interleave([phi_ops(QA + 4 * mt + r, RS1 + mt, C1 + mt, QA + 4 * mt + r, TT + r) for r in range(4)]):
            a(l)
        a(f"v_cvt_pk_bf16_f32 v{QA+4*mt}, v{QA+4*mt}, v{QA+4*mt+1}")
        a(f"v_cvt_pk_bf16_f32 v{QA+4*mt+1}, v{QA+4*mt+2}, v{QA+4*mt+3}")
        a(f"s_mov_b32 s20, {mt*16384}")
        a.vmem(f"buffer_store_dwordx2 v[{QA+4*mt}:{QA+4*mt+1}], v{OQ}, s[16:19], s20 offen")
    stamp(a, 4)
    finish(a, name, 4)
    return name, a, dict(nv=204 + 128, acc=204, ns=102), (256, 256, 73728 + 256)


def k2():
    a = Asm()
    name = "k2_kernel"
    start(a, name, 256)
    a("s_and_b32 s7, s2, 7\ns_lshl_b32 s7, s7, 3\ns_lshr_b32 s3, s2, 3\ns_and_b32 s20, s3, 7\ns_add_u32 s7, s7, s20")
    a("s_lshr_b32 s3, s3, 3")
    a(f"s_mul_i32 s21, s6, 12288\ns_add_u32 s21, s21, {OFF_KV}")
    a(f"s_lshl_b32 s22, s7, 15\ns_add_u32 s22, s22, {OFF_PQM}")
    a(f"s_lshl_b32 s23, s7, 12\ns_add_u32 s23, s23, {OFF_QREM}")
    a(f"s_mul_i32 s24, s3, {162*1024}\ns_add_u32 s24, s24, {OFF_WOP}")
    a("v_lshlrev_b32 v3, 2, v1")
    a("v_and_b32 v4, 3, v1\nv_lshrrev_b32 v5, 4, v1\nv_lshl_add_u32 v4, v5, 2, v4")
    a("v_and_b32 v5, 12, v1\nv_lshl_add_u32 v4, v5, 2, v4\nv_lshlrev_b32 v4, 2, v4")
    a("v_lshlrev_b32 v5, 3, v1")
    a("s_waitcnt lgkmcnt(0)")
    srd(a, 8, "s4", "s5", "s21", 12288)
    srd(a, 12, "s4", "s5", "s22", 32768)
    srd(a, 16, "s4", "s5", "s23", 4096)
    srd(a, 28, "s4", "s5", "s24", 162 * 1024)
    KVR, BR, A12, D1, D2 = 8, 56, 108, 172, 236
    kvt = {}
    for G in range(2):
        b = KVR + 24 * G
        a(f"s_mov_b32 s20, {6144*G+4096}")
        for r in range(4):
            a.vmem(f"buffer_load_dword v{b+16+r}, v4, s[8:11], s20 offen offset:{r*256}")
        for r in range(4):
            a.vmem(f"buffer_load_dword v{b+20+r}, v3, s[8:11], s20 offen offset:{1024+r*256}")
        a(f"s_mov_b32 s20, {6144*G}")
        for i in range(16):
            kvt[G] = a.vmem(f"buffer_load_dword v{b+i}, v3, s[8:11], s20 offen offset:{i*256}")
    a("s_lshl_b32 s20, s6, 9")
    for mt in range(2):
        b = BR + 26 * mt
        a.vmem(f"buffer_load_dwordx2 v[{b}:{b+1}], v5, s[16:19], s20 offen offset:{mt*2048}")
    for mt in range(2):
        a(f"s_lshl_b32 s20, s6, 12\ns_add_u32 s20, s20, {mt*16384}")
        for q in range(4):
            b = BR + 26 * mt + 6 * q + 2
            pqt = a.vmem(f"buffer_load_dwordx4 v[{b}:{b+3}], v2, s[12:15], s20 offen offset:{q*1024}")
    wt = {}
    a("s_mul_i32 s20, s6, 36864")
    for i in range(36):
        if i % 4 == 0 and i:
            a("s_add_u32 s20, s20, 4096")
        wt[i] = a.vmem(f"buffer_load_dwordx4 a[{4*i}:{4*i+3}], v2, s[28:31], s20 offen offset:{(i%4)*1024}")
    a(f"s_mul_i32 s21, s7, 36864\ns_add_u32 s22, s21, {OFF_XA}\ns_add_u32 s21, s21, {OFF_XB}")
    srd(a, 32, "s4", "s5", "s22", 36864)
    srd(a, 36, "s4", "s5", "s21", 36864)
    a("s_mul_i32 s21, s3, 9\ns_add_u32 s21, s21, 1\ns_lshr_b32 s21, s21, 1\ns_add_u32 s21, s21, s6\ns_lshl_b32 s21, s21, 10")
    a("s_add_u32 s22, s21, 18432")
    a("s_lshr_b32 s23, s3, 1\ns_mul_i32 s23, s23, 9\ns_add_u32 s23, s23, 4\ns_lshl_b32 s23, s23, 10")
    a("s_and_b32 s24, s3, 1\ns_lshl_b32 s24, s24, 3\ns_add_u32 s23, s23, s24\ns_add_u32 s24, s23, 18432")
    for mt in range(2):
        xt = a.vmem(f"buffer_load_dwordx4 a[{216+4*mt}:{216+4*mt+3}], v2, s[32:35], s{21+mt} offen")
    for j in range(4):
        m1 = 0x000f000f << (4 * j)
        a(f"s_mov_b32 s{40+2*j}, {m1}\ns_mov_b32 s{41+2*j}, {m1}")
        g0 = (j + 1) & 3
        m0 = 0xffff << (16 * g0)
        a(f"s_mov_b32 s{48+2*j}, {m0 & 0xffffffff}\ns_mov_b32 s{49+2*j}, {m0 >> 32}")
    def aslots(hh):
        G = hh >> 2
        if hh & 1 == 0:
            return 2, G, 1 - G
        return 0, 2 + G, 3 - G
    for hh in range(8):
        mb, ru, rz = aslots(hh)
        a(f"v_mov_b32 v{A12+8*hh+rz}, 0\nv_mov_b32 v{A12+8*hh+4+rz}, 0")
    stamp(a, 0)
    for G in range(2):
        b = KVR + 24 * G
        a.wait(vm=kvt[G])
        a(f"v_cvt_pk_bf16_f32 v{b+16}, v{b+16}, v{b+17}")
        a(f"v_cvt_pk_bf16_f32 v{b+17}, v{b+18}, v{b+19}")
        a(f"v_cvt_pk_bf16_f32 v{b+20}, v{b+20}, v{b+21}")
        a(f"v_cvt_pk_bf16_f32 v{b+22}, v{b+22}, v{b+23}")
        for j in range(4):
            hh = 4 * G + j
            mb, ru, rz = aslots(hh)
            a1, a2 = A12 + 8 * hh, A12 + 8 * hh + 4
            a(f"v_cvt_pk_bf16_f32 v{a1+mb}, v{b+4*j}, v{b+4*j+1}")
            a(f"v_cvt_pk_bf16_f32 v{a1+mb+1}, v{b+4*j+2}, v{b+4*j+3}")
            a(f"v_cndmask_b32 v{a1+ru}, 0, v{b+20}, s[{48+2*j}:{49+2*j}]")
            a(f"v_cndmask_b32 v{a2+mb}, 0, v{b+16}, s[{40+2*j}:{41+2*j}]")
            a(f"v_cndmask_b32 v{a2+mb+1}, 0, v{b+17}, s[{40+2*j}:{41+2*j}]")
            a(f"v_cndmask_b32 v{a2+ru}, 0, v{b+22}, s[{40+2*j}:{41+2*j}]")
    stamp(a, 1)
    a.wait(vm=pqt)
    stamp(a, 2)
    for mt in range(2):
        b = BR + 26 * mt
        for q in range(1, 5):
            a(f"v_mov_b32 v{b+6*q}, v{b}\nv_mov_b32 v{b+6*q+1}, v{b+1}")
    a("s_cmp_lg_u32 s6, 0\ns_cbranch_scc1 L_k2_noh")
    a(f"s_mov_b32 s20, {144*1024}")
    for i in range(18):
        if i % 4 == 0 and i:
            a("s_add_u32 s20, s20, 4096")
        a(f"buffer_load_dwordx4 a[{144+4*i}:{144+4*i+3}], v2, s[28:31], s20 offen offset:{(i%4)*1024}")
    for mt in range(2):
        a(f"buffer_load_dwordx2 a[{224+2*mt}:{224+2*mt+1}], v2, s[32:35], s{23+mt} offen")
    a("L_k2_noh:")

    def bop(hh, mt):
        q = hh >> 1
        b = BR + 26 * mt + 6 * q + (0 if hh & 1 == 0 else 4)
        return f"v[{b}:{b+3}]"
    for hh in range(8):
        for mt in range(2):
            d = D2 + 8 * (hh >> 2) + 4 * mt
            c = "0" if hh & 3 == 0 else f"v[{d}:{d+3}]"
            a2 = A12 + 8 * hh + 4
            a(f"v_mfma_f32_16x16x32_bf16 v[{d}:{d+3}], v[{a2}:{a2+3}], {bop(hh,mt)}, {c}")
    for hh in range(8):
        for mt in range(2):
            d = D1 + 8 * hh + 4 * mt
            a1 = A12 + 8 * hh
            a(f"v_mfma_f32_16x16x32_bf16 v[{d}:{d+3}], v[{a1}:{a1+3}], {bop(hh,mt)}, 0")
    a("s_lshl_b32 s20, s6, 13\nv_add_u32 v6, s20, v2")
    a("s_lshr_b32 s20, s6, 1\ns_lshl_b32 s20, s20, 11\ns_and_b32 s25, s6, 1\ns_lshl_b32 s25, s25, 3\ns_add_u32 s20, s20, s25\ns_add_u32 s20, s20, 32768")
    a("v_add_u32 v7, s20, v2")
    RC, ORM = 8, 24
    for G in range(2):
        for mt in range(2):
            d = D2 + 8 * G + 4 * mt
            rc = RC + 8 * G + 4 * mt
            a(f"v_add_f32 v{rc}, {EPS_6}, v{d+3}")
            a(f"v_rcp_f32 v{rc}, v{rc}")
    for G in range(2):
        for mt in range(2):
            d = D2 + 8 * G + 4 * mt
            rc = RC + 8 * G + 4 * mt
            a(f"v_mul_f32 v{d}, v{d}, v{rc}\nv_mul_f32 v{d+1}, v{d+1}, v{rc}")
            a(f"v_mov_b32 v{rc+1}, v{rc}")
            a(f"v_cvt_pk_bf16_f32 v{ORM+2*mt+G}, v{d}, v{d+1}")
    for i in range(4):
        rc = RC + 4 * i
        a(f"v_permlane16_swap_b32 v{rc}, v{rc+1}")
    for i in range(4):
        rc = RC + 4 * i
        a(f"v_mov_b32 v{rc+2}, v{rc}\nv_mov_b32 v{rc+3}, v{rc+1}")
    for i in range(4):
        rc = RC + 4 * i
        a(f"v_permlane32_swap_b32 v{rc}, v{rc+2}")
        a(f"v_permlane32_swap_b32 v{rc+1}, v{rc+3}")
    for mt in range(2):
        a.ds(f"ds_write_b64 v7, v[{ORM+2*mt}:{ORM+2*mt+1}] offset:{mt*1024}")
    OF = 28
    n = 0
    for q in range(4):
        for mt in range(2):
            o = OF + 4 * (n % 4)
            n += 1
            for s in range(2):
                hh = 2 * q + s
                d = D1 + 8 * hh + 4 * mt
                rc = RC + 8 * (hh >> 2) + 4 * mt + (hh & 3)
                for r in range(4):
                    a(f"v_mul_f32 v{d+r}, v{d+r}, v{rc}")
                a(f"v_cvt_pk_bf16_f32 v{o+2*s}, v{d}, v{d+1}")
                a(f"v_cvt_pk_bf16_f32 v{o+2*s+1}, v{d+2}, v{d+3}")
            a.ds(f"ds_write_b128 v6, v[{o}:{o+3}] offset:{(2*q+mt)*1024}")
    stamp(a, 3)
    a.wait_lg0()
    a("s_barrier")
    stamp(a, 4)
    OB, ACC = 108, 56
    ot = {}
    for i in range(36):
        ot[i] = a.ds(f"ds_read_b128 v[{OB+4*i}:{OB+4*i+3}], v2 offset:{i*1024}")
        if i == 11:
            break
    a("s_waitcnt vmcnt(0)")
    a.vm_done = a.vm
    stamp(a, 5)
    nxt = 12
    for ks in range(18):
        a.wait(lg=ot[2 * ks + 1])
        for hf in range(2):
            for mt in range(2):
                d = ACC + 8 * hf + 4 * mt
                w = 4 * (2 * ks + hf)
                o = OB + 4 * (2 * ks + mt)
                c = "0" if ks == 0 else f"v[{d}:{d+3}]"
                a(f"v_mfma_f32_16x16x32_bf16 v[{d}:{d+3}], a[{w}:{w+3}], v[{o}:{o+3}], {c}")
                if nxt < 36 and mt == 0:
                    ot[nxt] = a.ds(f"ds_read_b128 v[{OB+4*nxt}:{OB+4*nxt+3}], v2 offset:{nxt*1024}")
                    nxt += 1
    stamp(a, 6)
    a("s_cmp_lg_u32 s6, 0\ns_cbranch_scc1 L_k2_noh2")
    for ks in range(18):
        for mt in range(2):
            d = ACC + 16 + 4 * mt
            w = 144 + 4 * ks
            o = OB + 4 * (2 * ks + mt)
            c = "0" if ks == 0 else f"v[{d}:{d+3}]"
            a(f"v_mfma_f32_16x16x32_bf16 v[{d}:{d+3}], a[{w}:{w+3}], v[{o}:{o+3}], {c}")
    for mt in range(2):
        d = ACC + 16 + 4 * mt
        for j in range(2):
            a(f"v_accvgpr_read_b32 v{8+j}, a{224+2*mt+j}")
        for j in range(2):
            a(f"v_lshlrev_b32 v{10+2*j}, 16, v{8+j}\nv_and_b32 v{11+2*j}, 0xffff0000, v{8+j}")
        for r in range(4):
            a(f"v_add_f32 v{d+r}, v{d+r}, v{10+r}")
        a(f"v_cvt_pk_bf16_f32 v{d}, v{d}, v{d+1}\nv_cvt_pk_bf16_f32 v{d+1}, v{d+2}, v{d+3}")
        a(f"buffer_store_dwordx2 v[{d}:{d+1}], v2, s[36:39], s{23+mt} offen")
    a("L_k2_noh2:")
    a("s_nop 7")
    for mt in range(2):
        for j in range(4):
            a(f"v_accvgpr_read_b32 v{8+j}, a{216+4*mt+j}")
        for j in range(4):
            a(f"v_lshlrev_b32 v{12+2*j}, 16, v{8+j}\nv_and_b32 v{13+2*j}, 0xffff0000, v{8+j}")
        for hf in range(2):
            d = ACC + 8 * hf + 4 * mt
            for r in range(4):
                a(f"v_add_f32 v{12+4*hf+r}, v{d+r}, v{12+4*hf+r}")
        o = 20 + 4 * mt
        for j in range(4):
            a(f"v_cvt_pk_bf16_f32 v{o+j}, v{12+2*j}, v{13+2*j}")
        a(f"buffer_store_dwordx4 v[{o}:{o+3}], v2, s[36:39], s{21+mt} offen")
    finish(a, name, 4)
    return name, a, dict(nv=256 + 228, acc=256, ns=102), (256, 256, 36864)


def k3():
    a = Asm()
    name = "k3_kernel"
    start(a, name, 256)
    rowmap(a)
    a(f"s_mul_i32 s21, s7, 73728\ns_add_u32 s22, s21, {OFF_XB}")
    a(f"s_lshl_b32 s23, s3, 2\ns_add_u32 s23, s23, s6\ns_mul_i32 s23, s23, {324*1024}")
    if OFF_WFP:
        a(f"s_add_u32 s23, s23, {OFF_WFP}")
    a("s_waitcnt lgkmcnt(0)")
    srd(a, 12, "s4", "s5", "s22", 73728)
    srd(a, 8, "s4", "s5", "s23", 324 * 1024)
    xt = dma_x_tile(a, 12)
    D = 6
    BXV, ACC, RING = 12, 44, 140
    TMP = 212
    HB, STAT = 73728, 147456
    ring = {}
    a("s_mov_b32 s26, 0")

    def wload(n, t):
        r = RING + ((n % D) * 3 + t) * 4
        ring[(n, t)] = a.vmem(f"buffer_load_dwordx4 v[{r}:{r+3}], v2, s[8:11], s26 offen offset:{t*1024}")
        if t == 2:
            a("s_add_u32 s26, s26, 3072")
    for n in range(D):
        for t in range(3):
            wload(n, t)
    VX1, VS, VH0, VH1, VW0, VW1, VP0, VP1 = 3, 4, 5, 6, 7, 8, 9, 10
    a(f"v_add_u32 v{VX1}, 36864, v2")
    a(f"s_mul_i32 s20, s6, 18432\nv_add_u32 v{VS}, s20, v2")
    a(f"v_add_u32 v{VH0}, {HB}, v2\nv_add_u32 v{VH1}, {HB+36864}, v2")
    a(f"s_lshl_b32 s20, s6, 12\nv_add_u32 v{VW0}, s20, v{VH0}")
    a("s_lshr_b32 s24, s6, 1\ns_add_u32 s24, s24, 4\ns_and_b32 s25, s6, 1\ns_lshl_b32 s25, s25, 3")
    a(f"s_lshl_b32 s20, s24, 12\ns_add_u32 s20, s20, s25\nv_add_u32 v{VW1}, s20, v{VH0}")
    a(f"s_lshl_b32 s20, s6, 10\nv_add_u32 v{VP0}, s20, v2")
    a(f"s_lshl_b32 s20, s24, 10\ns_add_u32 s20, s20, s25\nv_add_u32 v{VP1}, s20, v2")
    a(f"s_mul_i32 s22, s3, {XF_BYTES}\ns_add_u32 s22, s22, s21\ns_add_u32 s22, s22, {OFF_PART}")
    srd(a, 16, "s4", "s5", "s22", 73728)
    for p in range(3):
        for mt in range(4):
            a(f"s_mov_b32 s{28+4*p+mt}, {mt*18432+p*6144}")
    ST, SUM, SQ = TMP, TMP + 8, TMP + 9
    CS = TMP + 10
    ST1 = TMP + 18
    PK = TMP + 26
    T0 = TMP + 38
    a(f"v_mov_b32 v{SUM}, 0\nv_mov_b32 v{SQ}, 0\ns_mov_b32 s27, 0x3f803f80")

    def breg(ks, mt):
        i = ks * 4 + mt
        return ar(4 * i, 4) if i < 64 else vr(BXV + 4 * (i - 64), 4)
    br = {}
    sr_ = {}

    def bread(ph, ks, mt):
        if ph == 0:
            base = "v2" if mt < 2 else f"v{VX1}"
            off = ((mt % 2) * 18 + ks) * 1024
        else:
            base = f"v{VH0}" if ks < 9 else f"v{VH1}"
            off = ((ks % 9) * 4 + mt) * 1024
        br[(ph, ks, mt)] = a.ds(f"ds_read_b128 {breg(ks,mt)}, {base} offset:{off}")

    def sread(ks):
        r = ST + (ks % 2) * 4
        sr_[ks] = a.ds(f"ds_read_b128 v[{r}:{r+3}], v{VS} offset:{ks*1024}")

    def silu_fill(st, p):
        out = []
        for mt in range(4):
            pk = PK + 6 * (mt % 2)
            for t in range(3):
                d = ACC + 48 * st + (t * 4 + mt) * 4
                tm = ST1 + 4 * ((mt * 3 + t) % 2)
                c1, sd = CS + 2 * mt, CS + 2 * mt + 1
                out += [f"v_mul_f32 v{tm+r}, v{d+r}, v{c1}" for r in range(4)]
                out += [f"v_exp_f32 v{tm+r}, v{tm+r}" for r in range(4)]
                out += [f"v_fma_f32 v{tm+r}, v{tm+r}, v{sd}, v{sd}" for r in range(4)]
                out += [f"v_rcp_f32 v{tm+r}, v{tm+r}" for r in range(4)]
                out += [f"v_mul_f32 v{tm+r}, v{d+r}, v{tm+r}" for r in range(4)]
                out += [f"v_cvt_pk_bf16_f32 v{pk+2*t}, v{tm}, v{tm+1}", f"v_cvt_pk_bf16_f32 v{pk+2*t+1}, v{tm+2}, v{tm+3}"]
                if t == 1:
                    out.append(("ds", f"ds_write_b128 v{VW0}, v[{pk}:{pk+3}] offset:{p*24576+mt*1024}"))
                if t == 2:
                    out.append(("ds", f"ds_write_b64 v{VW1}, v[{pk+4}:{pk+5}] offset:{p*24576+mt*1024}"))
        return out

    def store_fill(st, p):
        out = []
        for mt in range(4):
            pk = PK + 6 * (mt % 2)
            for t in range(3):
                d = ACC + 48 * st + (t * 4 + mt) * 4
                out += [f"v_cvt_pk_bf16_f32 v{pk+2*t}, v{d}, v{d+1}", f"v_cvt_pk_bf16_f32 v{pk+2*t+1}, v{d+2}, v{d+3}"]
                if t == 1:
                    out.append(("vm", f"buffer_store_dwordx4 v[{pk}:{pk+3}], v{VP0}, s[16:19], s{28+4*p+mt} offen"))
                if t == 2:
                    out.append(("vm", f"buffer_store_dwordx2 v[{pk+4}:{pk+5}], v{VP1}, s[16:19], s{28+4*p+mt} offen"))
        return out

    def emit(f):
        if isinstance(f, tuple):
            (a.ds if f[0] == "ds" else a.vmem)(f[1])
        else:
            a(f)

    def cost(f):
        if isinstance(f, tuple):
            return 1
        return 2 if f.startswith(("v_exp", "v_rcp")) else 1

    stamp(a, 0)
    a.wait(vm=xt)
    a("s_barrier")
    stamp(a, 1)
    for ks in range(2):
        for mt in range(4):
            bread(0, ks, mt)
    sread(0)
    fill = []
    for ps in range(6):
        st = ps % 2
        if ps in (1, 2, 3):
            fill = silu_fill(1 - st, ps - 1)
        elif ps in (4, 5):
            fill = store_fill(1 - st, ps - 4)
        fsteps = {0: 18, 1: 17, 2: 15, 3: 9, 4: 12, 5: 12}[ps]
        total = sum(cost(f) for f in fill)
        spent = 0
        for ks in range(18):
            n = ps * 18 + ks
            lg = None
            if ps == 0:
                lg = max(br[(0, ks, 3)], sr_[ks])
            elif ps == 3:
                lg = br[(1, ks, 3)]
            a.wait(vm=ring[(n, 2)], lg=lg)
            pre = []
            if ps == 0:
                if ks + 2 < 18:
                    pre += [lambda mt=mt: bread(0, ks + 2, mt) for mt in range(4)]
                if ks + 1 < 18:
                    pre.append(lambda: sread(ks + 1))
                r = ST + (ks % 2) * 4
                fill = []
                for j in range(4):
                    fill.append(f"v_dot2c_f32_bf16 v{SUM}, s27, v{r+j}")
                    fill.append(f"v_dot2c_f32_bf16 v{SQ}, v{r+j}, v{r+j}")
            elif ps == 2 and ks >= 16:
                if ks == 16:
                    assert not fill
                    a.wait_lg0()
                    a("s_barrier")
                pre += [lambda mt=mt: bread(1, ks - 16, mt) for mt in range(4)]
            elif ps == 3 and ks + 2 < 18:
                if ks == 10:
                    assert not fill
                    a.wait_lg0()
                    a("s_barrier")
                pre += [lambda mt=mt: bread(1, ks + 2, mt) for mt in range(4)]
            i = 0
            for t in range(3):
                w = RING + ((n % D) * 3 + t) * 4
                for mt in range(4):
                    d = ACC + 48 * st + (t * 4 + mt) * 4
                    c = "0" if ks == 0 else f"v[{d}:{d+3}]"
                    a(f"v_mfma_f32_16x16x32_bf16 v[{d}:{d+3}], v[{w}:{w+3}], {breg(ks,mt)}, {c}")
                    i += 1
                    if pre:
                        pre.pop(0)()
                    if ps == 0:
                        if i > 4 and fill:
                            a(fill.pop(0))
                    elif not (ks == 0 and i < 3):
                        target = total * (ks * 12 + i) / (fsteps * 12)
                        while fill and spent < target:
                            f = fill.pop(0)
                            spent += cost(f)
                            emit(f)
                if n + D < 108:
                    wload(n + D, t)
            assert not pre
        assert not fill, (ps, len(fill))
        stamp(a, 2 + ps)
        if ps == 0:
            ln_finalize(a, SUM, SQ, T0)
            a(f"v_mul_f32 v{SQ}, v{SQ}, v{SUM}")
            a(f"v_mul_f32 v{SUM}, {NLOG2E}, v{SUM}")
            a(f"v_and_b32 v{T0}, 15, v1\nv_lshlrev_b32 v{T0}, 3, v{T0}\nv_add_u32 v{T0}, {STAT}, v{T0}")
            a(f"s_lshl_b32 s20, s6, 7\nv_add_u32 v{T0+1}, s20, v{T0}")
            a.ds(f"ds_write_b64 v{T0+1}, v[{SUM}:{SUM+1}]")
            a.wait_lg0()
            a("s_barrier")
            for mt in range(4):
                a.ds(f"ds_read_b64 v[{CS+2*mt}:{CS+2*mt+1}], v{T0} offset:{128*mt}")
            a.wait_lg0()
    for f in store_fill(1, 2):
        emit(f)
    finish(a, name, 4)
    return name, a, dict(nv=512, acc=256, ns=102), (256, 256, 147456 + 512)


def k4(final):
    a = Asm()
    name = "k4f_kernel" if final else "k4_kernel"
    start(a, name, 256)
    if final:
        a("s_load_dwordx2 s[24:25], s[0:1], 48")
    a("s_and_b32 s3, s2, 7\ns_lshl_b32 s3, s3, 5\ns_lshr_b32 s7, s2, 3\ns_add_u32 s3, s3, s7")
    a("s_mul_i32 s7, s3, 9\ns_add_u32 s7, s7, s6\ns_lshl_b32 s7, s7, 10")
    a("v_add_u32 v3, s7, v2")
    a("s_waitcnt lgkmcnt(0)")
    srd(a, 8, "s4", "s5", OFF_PART, 8 * XF_BYTES)
    srd(a, 12, "s4", "s5", OFF_XB, XF_BYTES)
    tk = []
    tk.append(a.vmem("buffer_load_dwordx4 v[8:11], v3, s[12:15], 0 offen"))
    for f in range(8):
        a(f"s_mov_b32 s20, {f*XF_BYTES}")
        tk.append(a.vmem(f"buffer_load_dwordx4 v[{12+4*f}:{15+4*f}], v3, s[8:11], s20 offen"))
    if final:
        srd(a, 16, "s24", "s25", 0, XF_BYTES)
        a("s_lshr_b32 s21, s3, 1\ns_mul_i32 s21, s21, 18432")
        a("s_and_b32 s22, s3, 1\ns_mul_i32 s22, s22, 9\ns_add_u32 s22, s22, s6\ns_lshl_b32 s22, s22, 6\ns_add_u32 s21, s21, s22")
        a("v_and_b32 v4, 15, v1\nv_mul_u32_u24 v4, 1152, v4\nv_lshrrev_b32 v5, 4, v1\nv_lshl_add_u32 v4, v5, 4, v4")
        a("v_add_u32 v3, s21, v4")
    else:
        srd(a, 16, "s4", "s5", OFF_XA, XF_BYTES)
        srd(a, 28, "s4", "s5", OFF_KV, 49152)
        for j in range(4):
            a(f"v_mov_b32 v{60+j}, 0")
        a.vmem("buffer_store_dwordx4 v[60:63], v3, s[28:31], 0 offen")
    S = 44
    for i in range(9):
        a.wait(vm=tk[i])
        b = 8 + 4 * i
        for j in range(4):
            if i == 0:
                a(f"v_lshlrev_b32 v{S+2*j}, 16, v{b+j}\nv_and_b32 v{S+2*j+1}, 0xffff0000, v{b+j}")
            else:
                a(f"v_lshlrev_b32 v{52+2*j}, 16, v{b+j}\nv_and_b32 v{53+2*j}, 0xffff0000, v{b+j}")
        if i:
            for j in range(8):
                a(f"v_add_f32 v{S+j}, v{S+j}, v{52+j}")
    for j in range(4):
        a(f"v_cvt_pk_bf16_f32 v{S+j}, v{S+2*j}, v{S+2*j+1}")
    a.vmem(f"buffer_store_dwordx4 v[{S}:{S+3}], v3, s[16:19], 0 offen")
    finish(a, name, 9)
    return name, a, dict(nv=64, acc=64, ns=102 if STAMP else 40), (256, 576, 0)


HEADER = """; interleave_layers: 2 x (LN -> linear attention -> residual, LN -> SiLU FFN -> residual), S=2048 D=576 F=4608 H=32
"""


def build(order=None, delay=False):
    ks = {}
    for f in (k0, k1, k2, k3, lambda: k4(False), lambda: k4(True)):
        name, a, kd, geo = f()
        ks[name] = (a, kd, geo)
    if order is None:
        order = ["k0_kernel", "k1_kernel", "k2_kernel", "k3_kernel", "k4_kernel",
                 "k1_kernel", "k2_kernel", "k3_kernel", "k4f_kernel"]
    s = HEADER
    if delay:
        s += "; @launch kernel=delay_kernel grid=(256,1,1) block=(64,1,1) lds=0\n"
    for n in order:
        g, b, l = ks[n][2]
        s += f"; @launch kernel={n} grid=({g},1,1) block=({b},1,1) lds={l}\n"
    s += '.amdgcn_target "amdgcn-amd-amdhsa--gfx950"\n.text\n'
    kd = '.section .rodata,"a"\n'
    if delay:
        s += ".globl delay_kernel\n.p2align 8\n.type delay_kernel,@function\ndelay_kernel:\ns_mov_b32 s4, 3000\nL_dl:\ns_sleep 4\ns_sub_u32 s4, s4, 1\ns_cmp_lg_u32 s4, 0\ns_cbranch_scc1 L_dl\ns_endpgm\n"
        kd += KD.format(name="delay_kernel", nv=8, acc=8, ns=16)
    for n, (a, d, geo) in ks.items():
        if n not in order:
            continue
        s += a.text()
        kd += KD.format(name=n, **d)
        sys.stderr.write(f"{n}: {len(a.lines)} lines, {a.nops} nops inserted\n")
    return s + kd


if __name__ == "__main__":
    out = sys.argv[1]
    if len(sys.argv) > 2 and sys.argv[2] == "stamp":
        STAMP = True
        open(out, "w").write(build(delay=True))
    else:
        open(out, "w").write(build())
```

```python
import sys, os
sys.path.insert(0, os.path.dirname(os.path.abspath(__file__)))
from asm import *

OFF_WFP = 0x0
OFF_WQKVP = 0xA20000
OFF_WOP = 0xC60000
OFF_Z = 0xD10000
Z_BYTES = 0x20000
Z_KV = 0x0
Z_GF = 0x18000
Z_XM = 0x18800
Z_CF = 0x19000
OFF_L = 0xE00000
L_STRIDE = 0x2000000
L_XA = 0x0
L_XB = 0x240000
L_PQM = 0x480000
L_QREM = 0x680000
L_PART = 0x700000
OFF_XA = OFF_L + L_XA
OFF_STAMP = 0x8000000
XF_BYTES = 0x240000
LOG2E = 0x3FB8AA3B
NLOG2E = 0xBFB8AA3B
INV576 = 0x3AE38E39
EPS_LN = 0x3727C5AC
EPS_6 = 0x358637BD

STAMP = False


def start(a, name, nwg):
    a(f".globl {name}\n.p2align 8\n.type {name},@function\n{name}:")
    a(f"s_cmp_ge_u32 s2, {nwg}\ns_cbranch_scc1 L_{name}_end")
    if STAMP:
        a("s_memrealtime s[92:93]\ns_memtime s[94:95]\ns_load_dwordx2 s[90:91], s[0:1], 56")
        for i in range(24):
            a(f"s_mov_b32 s{60+i}, 0")
    a("s_load_dwordx2 s[4:5], s[0:1], 64")
    a("v_lshrrev_b32 v1, 6, v0")
    a("v_readfirstlane_b32 s6, v1")
    a("v_and_b32 v1, 63, v0")
    a("v_lshlrev_b32 v2, 4, v1")


def stamp(a, i):
    if STAMP:
        a(f"s_memtime s[{60+2*i}:{61+2*i}]")


def finish(a, name, nwaves):
    if STAMP:
        a("s_waitcnt vmcnt(0) lgkmcnt(0)")
        a("s_memrealtime s[96:97]\ns_memtime s[98:99]")
        a("s_lshr_b32 s90, s90, 9\ns_and_b32 s90, s90, 31\ns_lshl_b32 s90, s90, 19")
        a(f"s_mul_i32 s91, s2, {nwaves}\ns_add_u32 s91, s91, s6\ns_lshl_b32 s91, s91, 7")
        a(f"s_add_u32 s90, s90, s91\ns_add_u32 s90, s90, {OFF_STAMP}")
        a("s_add_u32 s90, s4, s90\ns_addc_u32 s91, s5, 0")
        a("s_waitcnt lgkmcnt(0)")
        a("s_mov_b64 exec, -1")
        for i in range(8):
            a(f"v_mov_b32 v{4+i}, s{92+i}")
        a("v_mov_b32 v3, 0")
        a("global_store_dwordx4 v3, v[4:7], s[90:91]")
        a("global_store_dwordx4 v3, v[8:11], s[90:91] offset:16")
        for q in range(6):
            for i in range(4):
                a(f"v_mov_b32 v{12+4*q+i}, s{60+4*q+i}")
            a(f"global_store_dwordx4 v3, v[{12+4*q}:{15+4*q}], s[90:91] offset:{32+16*q}")
    a(f"L_{name}_end:\ns_endpgm")


def srd(a, d, lo, hi, off, size):
    a(f"s_add_u32 s{d}, {lo}, {off}")
    a(f"s_addc_u32 s{d+1}, {hi}, 0")
    a(f"s_and_b32 s{d+1}, s{d+1}, 0xffff")
    a(f"s_mov_b32 s{d+2}, {size}")
    a(f"s_mov_b32 s{d+3}, 0x20000")


def xg_sum(a, x, t):
    a(f"v_mov_b32 v{t}, v{x}")
    a(f"v_permlane32_swap_b32 v{x}, v{t}")
    a(f"v_add_f32 v{x}, v{x}, v{t}")
    a(f"v_mov_b32 v{t}, v{x}")
    a(f"v_permlane16_swap_b32 v{x}, v{t}")
    a(f"v_add_f32 v{x}, v{x}, v{t}")


def w2_frow(hk, half):
    ps, u = divmod(hk, 6)
    if u < 4:
        return 144 * u + 48 * ps + 16 * half
    return 144 * (2 * (u - 4) + half) + 48 * ps + 32


def k0():
    a = Asm()
    name = "k0_kernel"
    start(a, name, 224)
    a("s_load_dwordx4 s[24:27], s[0:1], 0")
    a("s_load_dwordx2 s[28:29], s[0:1], 16")
    a("s_load_dwordx4 s[32:35], s[0:1], 32")
    a("v_and_b32 v3, 15, v1")
    a("v_lshrrev_b32 v4, 4, v1")
    a("s_waitcnt lgkmcnt(0)")
    LV = 16

    def gather(rowoff, voff):
        for ks in range(18):
            for t in range(8):
                o = rowoff(ks, t)
                a(f"s_mov_b32 s20, {o}")
                a(f"buffer_load_ushort v{LV+ks*8+t}, {voff(ks)}, s[8:11], s20 offen")

    def div9(src):
        a(f"s_mul_i32 s21, {src}, 7282\ns_lshr_b32 s21, s21, 16")
        a(f"s_mul_i32 s3, s21, 9\ns_sub_u32 s3, {src}, s3")
        a("s_mul_i32 s22, s3, 11\ns_lshr_b32 s22, s22, 5")
        a("s_mul_i32 s23, s22, 3\ns_sub_u32 s23, s3, s23")

    def ncol(p, hf):
        a("v_lshrrev_b32 v5, 2, v3\nv_lshlrev_b32 v5, 3, v5\nv_and_b32 v6, 3, v3\nv_add_u32 v5, v5, v6")
        a(f"s_lshl_b32 s36, {p}, 5\ns_lshl_b32 s37, {hf}, 2\ns_add_u32 s36, s36, s37")
        a("v_add_u32 v5, s36, v5\nv_lshlrev_b32 v5, 1, v5")

    a("s_cmp_ge_u32 s2, 72\ns_cbranch_scc1 L_k0_w2")
    a("s_lshl_b32 s7, s2, 2\ns_add_u32 s7, s7, s6")
    div9("s7")
    srd(a, 8, "s32", "s33", 0, 576 * 4608 * 2)
    a("s_mul_i32 s16, s21, 324\ns_mul_i32 s17, s22, 54\ns_add_u32 s16, s16, s17\ns_add_u32 s16, s16, s23")
    a(f"s_lshl_b32 s16, s16, 10\ns_add_u32 s16, s16, {OFF_WFP}")
    a(f"s_mov_b32 s17, 3072\ns_mov_b32 s18, {INV576}")
    a(f"v_mul_u32_u24 v5, {8*9216}, v4")
    a("s_lshl_b32 s7, s7, 5\nv_lshlrev_b32 v6, 1, v3\nv_add_u32 v5, v5, v6\nv_add_u32 v5, s7, v5")
    gather(lambda ks, t: (32 * ks + t) * 9216, lambda ks: "v5")
    a("s_branch L_k0_tail")
    a("L_k0_w2:")
    a("s_cmp_ge_u32 s2, 144\ns_cbranch_scc1 L_k0_qkv")
    a("s_sub_u32 s7, s2, 72\ns_lshl_b32 s7, s7, 2\ns_add_u32 s7, s7, s6")
    div9("s7")
    srd(a, 8, "s34", "s35", 0, 576 * 4608 * 2)
    a("s_mul_i32 s16, s21, 324\ns_mul_i32 s17, s22, 54\ns_add_u32 s16, s16, s17\ns_add_u32 s16, s16, s23")
    a(f"s_add_u32 s16, s16, 162\ns_lshl_b32 s16, s16, 10\ns_add_u32 s16, s16, {OFF_WFP}")
    a("s_mov_b32 s17, 3072\ns_mov_b32 s18, 0")
    a("s_and_b32 s38, s21, 3")
    a("s_lshr_b32 s39, s38, 1\ns_add_u32 s39, s39, 4\ns_and_b32 s40, s38, 1")
    a("s_cmp_eq_u32 s23, 2\ns_cselect_b32 s38, s39, s38\ns_cselect_b32 s40, s40, s23")
    a("s_mul_i32 s39, s22, 6\ns_add_u32 s38, s38, s39")
    ncol("s38", "s40")
    a(f"v_mul_u32_u24 v6, {4*1152}, v4\nv_add_u32 v5, v5, v6")
    a(f"s_lshr_b32 s39, s21, 2\ns_mul_i32 s39, s39, {576*1152}\nv_add_u32 v5, s39, v5")
    gather(lambda ks, t: (w2_frow(ks, t >> 2) + (t & 3)) * 1152, lambda ks: "v5")
    a("s_branch L_k0_tail")
    a("L_k0_qkv:")
    a("s_cmp_ge_u32 s2, 176\ns_cbranch_scc1 L_k0_wo")
    a("s_sub_u32 s7, s2, 144")
    srd(a, 8, "s26", "s27", 0, 576 * 1728 * 2)
    a("s_cmp_eq_u32 s6, 3\ns_cselect_b32 s17, 54, s6\ns_cselect_b32 s19, 1, 3")
    a(f"s_mul_i32 s16, s7, 73728\ns_lshl_b32 s17, s17, 10\ns_add_u32 s16, s16, s17\ns_add_u32 s16, s16, {OFF_WQKVP}")
    a(f"s_lshl_b32 s17, s19, 10\ns_mov_b32 s18, {INV576}")
    a("s_add_u32 s38, s6, 1\ns_and_b32 s38, s38, 3\ns_mul_i32 s38, s38, 576")
    a("v_add_u32 v5, s38, v3")
    a("s_and_b32 s39, s7, 3\ns_add_u32 s40, s39, 1\ns_and_b32 s40, s40, 3")
    a("s_lshl_b32 s39, s39, 1\ns_lshl_b32 s40, s40, 1\ns_add_u32 s41, s40, 1")
    a("v_lshrrev_b32 v6, 1, v3\nv_and_b32 v7, 1, v3")
    a("v_mov_b32 v8, 0x100000")
    a("v_add_u32 v9, 1168, v7\nv_cmp_eq_u32 vcc, s39, v6\nv_cndmask_b32 v8, v8, v9, vcc")
    a("v_add_u32 v9, 592, v7\nv_cmp_eq_u32 vcc, s40, v6\nv_cndmask_b32 v8, v8, v9, vcc")
    a("v_add_u32 v9, 16, v7\nv_cmp_eq_u32 vcc, s41, v6\nv_cndmask_b32 v8, v8, v9, vcc")
    a("s_cmp_eq_u32 s6, 2\ns_cselect_b64 vcc, -1, 0")
    a("v_cndmask_b32 v5, v5, v8, vcc")
    a("s_mul_i32 s38, s7, 18\nv_add_u32 v5, s38, v5\nv_lshlrev_b32 v5, 1, v5")
    a(f"v_mul_u32_u24 v6, {8*3456}, v4\nv_add_u32 v5, v5, v6")
    gather(lambda ks, t: (32 * ks + t) * 3456, lambda ks: "v5")
    a("s_branch L_k0_tail")
    a("L_k0_wo:")
    a("s_cmp_ge_u32 s2, 185\ns_cbranch_scc1 L_k0_x")
    a("s_sub_u32 s7, s2, 176\ns_lshl_b32 s7, s7, 2\ns_add_u32 s7, s7, s6")
    div9("s7")
    srd(a, 8, "s28", "s29", 0, 576 * 576 * 2)
    a("s_lshr_b32 s38, s3, 1\ns_and_b32 s40, s3, 1")
    a("s_mul_i32 s16, s38, 36\ns_add_u32 s16, s16, s40")
    a("s_mul_i32 s39, s21, 9\ns_add_u32 s39, s39, 1\ns_lshr_b32 s39, s39, 1\ns_add_u32 s38, s38, s39")
    a("s_lshr_b32 s39, s21, 1\ns_mul_i32 s39, s39, 9\ns_add_u32 s39, s39, 4\ns_and_b32 s41, s21, 1")
    a("s_cmp_eq_u32 s3, 8\ns_cselect_b32 s38, s39, s38\ns_cselect_b32 s40, s41, s40\ns_cselect_b32 s17, 1024, 2048"
      .replace("s_cselect_b32 s17, 1024, 2048", "s_cselect_b32 s17, 1, 2"))
    a("s_lshl_b32 s17, s17, 10")
    a("s_mul_i32 s39, s21, 162\ns_add_u32 s16, s16, s39")
    a(f"s_lshl_b32 s16, s16, 10\ns_add_u32 s16, s16, {OFF_WOP}\ns_mov_b32 s18, 0")
    ncol("s38", "s40")
    a(f"v_mul_u32_u24 v6, {18*1152}, v4\nv_add_u32 v7, v5, v6")
    a(f"v_mul_u32_u24 v6, {4*1152}, v4\nv_add_u32 v5, v5, v6")

    def wo_row(ks, t):
        if ks < 16:
            return (18 * (2 * ks + (t >> 2)) + (t & 3)) * 1152
        return (18 * (16 * (ks - 16) + 4 * (t >> 1)) + 16 + (t & 1)) * 1152
    gather(wo_row, lambda ks: "v5" if ks < 16 else "v7")
    a("L_k0_tail:")
    srd(a, 12, "s4", "s5", "s16", 18 * 4096)
    a("s_waitcnt vmcnt(0)")
    for i in range(144):
        a(f"v_lshlrev_b32 v{LV+i}, 16, v{LV+i}")
    for j in range(4):
        a(f"v_mov_b32 v{8+j}, v{LV+j}")
    for i in range(4, 144):
        a(f"v_add_f32 v{8+(i&3)}, v{8+(i&3)}, v{LV+i}")
    a("v_add_f32 v8, v8, v9\nv_add_f32 v10, v10, v11\nv_add_f32 v8, v8, v10")
    xg_sum(a, 8, 9)
    a("v_mul_f32 v8, s18, v8")
    for i in range(144):
        a(f"v_sub_f32 v{LV+i}, v{LV+i}, v8")
    a("s_mov_b32 s20, 0")
    for ks in range(18):
        b = LV + ks * 8
        for j in range(4):
            a(f"v_cvt_pk_bf16_f32 v{b+j}, v{b+2*j}, v{b+2*j+1}")
        a(f"buffer_store_dwordx4 v[{b}:{b+3}], v2, s[12:15], s20 offen")
        a("s_add_u32 s20, s20, s17")
    a("s_branch L_k0_done")
    a("L_k0_x:")
    a("s_cmp_lt_u32 s2, 192\ns_cbranch_scc1 L_k0_zero")
    a("s_and_b32 s7, s2, 7\ns_lshl_b32 s7, s7, 4\ns_sub_u32 s3, s2, 192\ns_lshr_b32 s3, s3, 3\ns_lshl_b32 s3, s3, 2")
    a("s_add_u32 s7, s7, s3\ns_add_u32 s7, s7, s6\ns_mul_i32 s7, s7, 18432")
    srd(a, 8, "s24", "s25", "s7", 18432)
    a(f"s_add_u32 s7, s7, {OFF_XA}")
    srd(a, 12, "s4", "s5", "s7", 18432)
    a("v_mul_u32_u24 v5, 1152, v3\nv_lshlrev_b32 v6, 4, v4\nv_add_u32 v5, v5, v6")
    for ks in range(18):
        a(f"buffer_load_dwordx4 v[{LV+4*ks}:{LV+4*ks+3}], v5, s[8:11], 0 offen offset:{64*ks}")
    for ks in range(18):
        a(f"s_waitcnt vmcnt(17)")
        a(f"s_mov_b32 s20, {1024*ks}")
        a(f"buffer_store_dwordx4 v[{LV+4*ks}:{LV+4*ks+3}], v2, s[12:15], s20 offen")
    a("s_branch L_k0_done")
    a("L_k0_zero:")
    a("s_cmp_ge_u32 s2, 189\ns_cbranch_scc1 L_k0_done")
    a(f"s_sub_u32 s7, s2, 185\ns_lshl_b32 s7, s7, 15\ns_add_u32 s7, s7, {OFF_Z}")
    srd(a, 12, "s4", "s5", "s7", 32768)
    a("v_lshlrev_b32 v5, 4, v0")
    for j in range(4):
        a(f"v_mov_b32 v{8+j}, 0")
    for j in range(8):
        a(f"s_mov_b32 s20, {4096*j}")
        a("buffer_store_dwordx4 v[8:11], v5, s[12:15], s20 offen")
    a("L_k0_done:")
    finish(a, name, 4)
    return name, a, dict(nv=160, acc=160, ns=102), (224, 256, 0)


LN2 = 0x3F317218
SPIN_MAX = 1 << 17
STAMPOP = "s_memrealtime"
LIMIT = None
FORCE_SLOW = False

RING, RD = 140, 6
BXV = 12
HB, STAT = 73728, 147456


def pstamp(a, i):
    if STAMP:
        a(f"{STAMPOP} s[{60+2*i}:{61+2*i}]")


def breg(ks, mt):
    i = ks * 4 + mt
    return ar(4 * i, 4) if i < 64 else vr(BXV + 4 * (i - 64), 4)


def dma_x_tile(a, srdx):
    a("s_mul_i32 s20, s6, 18432")
    last = None
    for i in range(18):
        if i % 4 == 0:
            if i:
                a("s_add_u32 s20, s20, 4096")
            a("s_mov_b32 m0, s20")
        last = a.vmem(f"buffer_load_dwordx4 v2, s[{srdx}:{srdx+3}], s20 offen offset:{(i%4)*1024} sc1 lds")
    return last


class Ring:
    def __init__(self, a):
        self.a = a
        self.t = {}

    def reg(self, n, t):
        r = RING + ((n % RD) * 3 + t) * 4
        return f"v[{r}:{r+3}]"

    def load(self, n, t):
        self.t[(n, t)] = self.a.vmem(f"buffer_load_dwordx4 {self.reg(n,t)}, v2, s[8:11], s26 offen offset:{t*1024}")
        if t == 2:
            self.a("s_add_u32 s26, s26, 3072")

    def prefill(self):
        self.a("s_mov_b32 s26, 0")
        for n in range(RD):
            for t in range(3):
                self.load(n, t)


def q_ring_setup(a, ring):
    a(f"s_lshl_b32 s21, s3, 2\ns_add_u32 s21, s21, s6\ns_mul_i32 s21, s21, 73728\ns_add_u32 s21, s21, {OFF_WQKVP}")
    srd(a, 8, "s4", "s5", "s21", 73728)
    ring.prefill()


def f_ring_setup(a, ring):
    a(f"s_lshl_b32 s21, s3, 2\ns_add_u32 s21, s21, s6\ns_mul_i32 s21, s21, {324*1024}")
    srd(a, 8, "s4", "s5", "s21", 324 * 1024)
    ring.prefill()


uid = [0]


def cluster_signal(a, sync, last_store):
    uid[0] += 1
    u = uid[0]
    a(f"s_add_u32 s20, s52, {sync*4096}")
    a("v_mov_b32 v3, 1")
    a.wait(vm=last_store)
    a("s_mov_b64 exec, 1")
    a(f"s_cmp_eq_u32 s45, 1\ns_cbranch_scc1 L_sigf{u}")
    a("buffer_wbl2 sc1\ns_waitcnt vmcnt(0)")
    a("buffer_store_dword v3, off, s[56:59], s20 sc1")
    a(f"s_branch L_sigd{u}")
    a(f"L_sigf{u}:")
    a("buffer_store_dword v3, off, s[56:59], s20")
    a(f"L_sigd{u}:")
    a("s_mov_b64 exec, -1")


def cluster_wait(a, off):
    uid[0] += 1
    u = uid[0]
    a("v_and_b32 v3, 31, v1\nv_lshlrev_b32 v3, 2, v3")
    a(f"s_mov_b32 s21, {SPIN_MAX}")
    a(f"L_cw{u}:")
    a(f"buffer_load_dword v4, v3, s[56:59], {off} offen sc1")
    a("s_waitcnt vmcnt(0)")
    a("v_cmp_ne_u32 vcc, 0, v4")
    a("s_sub_u32 s21, s21, 1\ns_nop 0")
    a(f"s_cmp_eq_u32 vcc_lo, -1\ns_cbranch_scc1 L_cwd{u}")
    a(f"s_cmp_lg_u32 s21, 0\ns_cbranch_scc1 L_cw{u}")
    a(f"L_cwd{u}:")
    a.vm_done = a.vm


def stats_plan(a, base, wr):
    ST, DSQ, DSUM, ONES, T = base, base + 16, base + 20, base + 24, base + 28
    tk = {}

    def sread(k):
        r = ST + (k % 4) * 4
        tk[k] = a.ds(f"ds_read_b128 v[{r}:{r+3}], v4 offset:{k*1024}")

    def smfma(k):
        r = ST + (k % 4) * 4
        c1 = "0" if k == 0 else f"v[{DSQ}:{DSQ+3}]"
        c2 = "0" if k == 0 else f"v[{DSUM}:{DSUM+3}]"
        a(f"v_mfma_f32_16x16x32_bf16 v[{DSQ}:{DSQ+3}], v[{r}:{r+3}], v[{r}:{r+3}], {c1}")
        a(f"v_mfma_f32_16x16x32_bf16 v[{DSUM}:{DSUM+3}], v[{ONES}:{ONES+3}], v[{r}:{r+3}], {c2}")

    def init():
        a(f"s_mul_i32 s20, s6, 18432\nv_add_u32 v4, s20, v2")
        for j in range(4):
            a(f"v_mov_b32 v{ONES+j}, 0x3f803f80")
        a("s_mov_b32 s36, 0x22222222\ns_mov_b32 s37, 0x22222222\ns_mov_b32 s38, 0x44444444\ns_mov_b32 s39, 0x44444444")
        a("s_mov_b32 s40, 0x88888888\ns_mov_b32 s41, 0x88888888\ns_mov_b32 s42, 0x00f0000f\ns_mov_b32 s43, 0xf0000f00")

    fin = [f"v_cndmask_b32 v{DSQ}, v{DSQ}, v{DSQ+1}, s[36:37]",
           f"v_mul_f32 v{DSUM}, {INV576}, v{DSUM}",
           f"v_cndmask_b32 v{DSQ}, v{DSQ}, v{DSQ+2}, s[38:39]",
           f"v_mul_f32 v{DSUM}, v{DSUM}, v{DSUM}",
           f"v_cndmask_b32 v{DSQ}, v{DSQ}, v{DSQ+3}, s[40:41]",
           f"v_mul_f32 v{DSQ}, {INV576}, v{DSQ}",
           f"v_sub_f32 v{DSQ}, v{DSQ}, v{DSUM}",
           f"v_max_f32 v{DSQ}, 0, v{DSQ}",
           f"v_add_f32 v{DSQ}, {EPS_LN}, v{DSQ}",
           f"v_rsq_f32 v{DSUM}, v{DSQ}"]
    return dict(sread=sread, smfma=smfma, init=init, tk=tk, fin=fin, RS=DSUM, VAR=DSQ, T=T)


def pass0(a, ring, nsteps_total, accreg, swap, sp, publish, readback, late_fill):
    br = {}

    def bread(ks, mt):
        base = "v2" if mt < 2 else "v3"
        br[(ks, mt)] = a.ds(f"ds_read_b128 {breg(ks,mt)}, {base} offset:{((mt%2)*18+ks)*1024}")
    for mt in range(4):
        bread(0, mt)
    sp["sread"](0)
    sp["sread"](1)
    for mt in range(4):
        bread(1, mt)
    for ks in range(18):
        lg = br[(ks, 3)]
        if ks < 9:
            lg = max(lg, sp["tk"][2 * ks + 1])
        a.wait(vm=ring.t[(ks, 2)], lg=lg)
        pre = []
        if ks < 8:
            pre += [lambda: sp["sread"](2 * ks + 2), lambda: sp["sread"](2 * ks + 3)]
        if ks + 2 < 18:
            pre += [lambda mt=mt: bread(ks + 2, mt) for mt in range(4)]
        fill = []
        if ks == 10:
            fill = list(sp["fin"])
        if ks == 11:
            publish()
        if ks == 13:
            a.wait_lg0()
            a("s_barrier")
            readback()
        if ks >= 15:
            k = (len(late_fill) + (17 - ks)) // (18 - ks)
            fill = late_fill[:k]
            del late_fill[:k]
            if ks == 15:
                a.wait(lg=readback.last)
        i = 0
        for t in range(3):
            for mt in range(4):
                d = accreg(t, mt)
                c = "0" if ks == 0 else f"v[{d}:{d+3}]"
                x, w = breg(ks, mt), ring.reg(ks, t)
                if swap:
                    a(f"v_mfma_f32_16x16x32_bf16 v[{d}:{d+3}], {x}, {w}, {c}")
                else:
                    a(f"v_mfma_f32_16x16x32_bf16 v[{d}:{d+3}], {w}, {x}, {c}")
                i += 1
                if pre:
                    pre.pop(0)()
                nf = (len(fill) + (12 - i)) // (13 - i)
                for _ in range(nf):
                    a(fill.pop(0))
            if ks < 9 and t < 2:
                sp["smfma"](2 * ks + t)
            if ks + RD < nsteps_total:
                ring.load(ks + RD, t)
        assert not pre and not fill


def phi_pairs(a, pairs, one, masked=None):
    for (s, m, d, t, e) in pairs:
        a(f"v_pk_mul_f32 v[{t}:{t+1}], v[{s}:{s+1}], {m}")
    for (s, m, d, t, e) in pairs:
        a(f"v_exp_f32_e64 v{e}, v{t} clamp\nv_exp_f32_e64 v{e+1}, v{t+1} clamp")
    for (s, m, d, t, e) in pairs:
        a(f"v_pk_fma_f32 v[{t}:{t+1}], v[{t}:{t+1}], s[22:23], {one}")
    if masked:
        a(f"s_mov_b64 exec, {masked}")
    for (s, m, d, t, e) in pairs:
        a(f"v_max_f32 v{t}, v{t}, v{e}\nv_max_f32 v{t+1}, v{t+1}, v{e+1}")
    for (s, m, d, t, e) in pairs:
        a(f"v_pk_add_f32 v[{t}:{t+1}], v[{t}:{t+1}], s[24:25]")
    if masked:
        a("s_mov_b64 exec, -1")
    for (s, m, d, t, e) in pairs:
        a(f"v_cvt_pk_bf16_f32 v{d}, v{t}, v{t+1}")


def phase_q(a, ring):
    a(f"s_mul_i32 s22, s7, 73728\ns_add_u32 s22, s22, {L_XA}")
    srd(a, 12, "s48", "s49", "s22", 73728)
    xt = dma_x_tile(a, 12)
    ACC = 44
    KA, VA, RA, QA = ACC, ACC + 16, ACC + 32, ACC + 48
    C2, RS2, C1 = 212, 228, 244
    sp = stats_plan(a, 108, None)
    sp["init"]()
    a("v_add_u32 v3, 36864, v2")
    a("v_and_b32 v5, 15, v1\nv_lshrrev_b32 v6, 4, v1")
    a(f"s_lshl_b32 s20, s6, 6\ns_add_u32 s20, s20, {STAT}")
    a("v_lshl_add_u32 v7, v5, 2, s20")
    a(f"v_lshlrev_b32 v8, 2, v5\nv_add_u32 v8, {STAT}, v8")
    a(f"v_lshlrev_b32 v9, 4, v6\nv_add_u32 v9, {STAT}, v9")
    a(f"s_lshl_b32 s22, s7, 16\ns_add_u32 s22, s22, {L_PQM}")
    srd(a, 16, "s48", "s49", "s22", 65536)
    a(f"s_lshl_b32 s22, s7, 13\ns_add_u32 s22, s22, {L_QREM}")
    srd(a, 28, "s48", "s49", "s22", 8192)
    a(f"s_mul_i32 s22, s3, 6144\ns_mul_i32 s23, s44, 49152\ns_add_u32 s22, s22, s23\ns_add_u32 s22, s22, {OFF_Z+Z_KV}")
    srd(a, 32, "s4", "s5", "s22", 6144)

    def publish():
        a(f"v_mul_f32 v{sp['T']}, {LOG2E}, v{sp['RS']}")
        a("s_mov_b64 exec, s[42:43]")
        a.ds(f"ds_write_b32 v7, v{sp['RS']}")
        a.ds(f"ds_write_b32 v7, v{sp['T']} offset:256")
        a("s_mov_b64 exec, -1")

    def readback():
        for mt in range(4):
            a.ds(f"ds_read_b128 v[{C2+4*mt}:{C2+4*mt+3}], v9 offset:{256+64*mt}")
        for mt in range(4):
            a.ds(f"ds_read_b128 v[{RS2+4*mt}:{RS2+4*mt+3}], v9 offset:{64*mt}")
        for mt in range(4):
            readback.last = a.ds(f"ds_read_b32 v{C1+mt}, v8 offset:{256+64*mt}")
    SEL, OA, OB, OQ, OR_, ONEL = 124, 130, 131, 132, 133, 134
    late = []
    late += ["v_lshlrev_b32 v10, 2, v6", "v_sub_u32 v10, v5, v10"]
    late += [f"v_mov_b32 v{SEL+j}, 0" for j in range(6)]
    late += ["v_mov_b32 v136, 0x3f80", "v_mov_b32 v137, 0x3f800000"]
    for d in range(4):
        late += [f"v_cmp_eq_u32 vcc, {d}, v10", f"v_lshlrev_b32 v{OA}, 2, v1" if d == 0 else "s_nop 0", "s_nop 0",
                 f"v_cndmask_b32 v{SEL+2+(d>>1)}, v{SEL+2+(d>>1)}, v{136+(d&1)}, vcc"]
    late += [f"v_and_b32 v{OB}, 3, v5", f"v_lshl_add_u32 v{OB}, v6, 2, v{OB}", f"v_lshlrev_b32 v{OB}, 2, v{OB}"]
    pstamp(a, 0)
    a.wait(vm=xt)
    a("s_barrier")
    pstamp(a, 1)
    pass0(a, ring, 24, lambda t, mt: ACC + t * 16 + mt * 4, True, sp, publish, readback, late)
    pstamp(a, 2)
    a("s_add_u32 s27, s6, 1\ns_and_b32 s27, s27, 3")
    a("s_lshl_b32 s20, s27, 4\ns_mov_b64 s[36:37], 0xffff\ns_lshl_b64 s[36:37], s[36:37], s20")
    a("s_mov_b32 s38, 0x000f000f\ns_mov_b32 s39, 0x000f000f\ns_lshl_b32 s20, s6, 2\ns_lshl_b64 s[38:39], s[38:39], s20")
    a("s_mov_b32 s40, 0x00030003\ns_mov_b32 s41, 0x00030003\ns_lshl_b64 s[40:41], s[40:41], s20\ns_not_b64 s[40:41], s[40:41]")
    a("s_and_b64 s[42:43], s[36:37], s[38:39]")
    a(f"s_mov_b32 s22, {LN2}\ns_mov_b32 s23, {LN2}\ns_mov_b32 s24, {EPS_6}\ns_mov_b32 s25, {EPS_6}")
    a(f"v_cndmask_b32 v{ONEL}, 0, 1.0, s[40:41]")
    T1, T2 = 108, 116
    for h in range(2):
        phi_pairs(a, [(KA + 8 * h + 2 * i, f"v[{C2+8*h+2*i}:{C2+8*h+2*i+1}]", KA + 4 * h + i, T1 + 2 * i, T2 + 2 * i) for i in range(4)],
                  "1.0 op_sel_hi:[1,1,0]")
    for i in range(8):
        a(f"v_pk_mul_f32 v[{VA+2*i}:{VA+2*i+1}], v[{VA+2*i}:{VA+2*i+1}], v[{RS2+2*i}:{RS2+2*i+1}]")
    for i in range(8):
        a(f"v_cvt_pk_bf16_f32 v{VA+i}, v{VA+2*i}, v{VA+2*i+1}")
    MM, MR, RM, RR = 52, 56, 68, 72
    a(f"v_mfma_f32_16x16x32_bf16 v[{MM}:{MM+3}], v[{KA}:{KA+3}], v[{VA}:{VA+3}], 0")
    a(f"v_mfma_f32_16x16x32_bf16 v[{MM}:{MM+3}], v[{KA+4}:{KA+7}], v[{VA+4}:{VA+7}], v[{MM}:{MM+3}]")
    for h in range(2):
        phi_pairs(a, [(RA + 8 * h + 2 * i, f"v[{C2+8*h+2*i}:{C2+8*h+2*i+1}]", RA + 4 * h + i, T1 + 2 * i, T2 + 2 * i) for i in range(4)],
                  f"v[{ONEL}:{ONEL+1}] op_sel_hi:[1,1,0]", masked="s[40:41]")
        if h == 0:
            a("s_lshl_b32 s20, s6, 10")
            for r in range(4):
                a.vmem(f"buffer_atomic_add_f32 v{MM+r}, v{OA}, s[32:35], s20 offen offset:{r*256}")
    for s in range(2):
        for (d, x, y) in ((MR, KA, RA), (RM, RA, VA), (RR, RA, RA)):
            c = "0" if s == 0 else f"v[{d}:{d+3}]"
            a(f"v_mfma_f32_16x16x32_bf16 v[{d}:{d+3}], v[{x+4*s}:{x+4*s+3}], v[{y+4*s}:{y+4*s+3}], {c}")
    DT = 108
    for mt in range(4):
        sel = SEL + 2 if mt % 2 == 0 else SEL
        x = RA + 4 * (mt >> 1)
        a(f"v_mfma_f32_16x16x32_bf16 v[{DT+4*mt}:{DT+4*mt+3}], v[{x}:{x+3}], v[{sel}:{sel+3}], 0")
    a("s_lshl_b32 s20, s6, 6\ns_add_u32 s20, s20, 4096\ns_mov_b32 s21, 4096")
    a("s_mov_b64 exec, s[38:39]")
    for r in range(4):
        a.vmem(f"buffer_atomic_add_f32 v{MR+r}, v{OB}, s[32:35], s20 offen offset:{r*256}")
    a("s_mov_b64 exec, s[42:43]")
    for r in range(2):
        a.vmem(f"buffer_atomic_add_f32 v{RR+r}, v{OA}, s[32:35], s21 offen offset:{1536+r*256}")
    a("s_mov_b64 exec, s[36:37]")
    for r in range(2):
        a.vmem(f"buffer_atomic_add_f32 v{RM+r}, v{OA}, s[32:35], s21 offen offset:{1024+r*256}")
    a("s_lshr_b32 s20, s3, 1\ns_lshl_b32 s20, s20, 9\ns_and_b32 s21, s3, 1\ns_lshl_b32 s21, s21, 2\ns_add_u32 s20, s20, s21")
    a(f"v_lshl_add_u32 v{OR_}, v1, 3, s20")
    for mt in range(4):
        a(f"v_cvt_pk_bf16_f32 v{DT+4*mt}, v{DT+4*mt+2}, v{DT+4*mt+3}")
        a(f"s_mov_b32 s20, {mt*2048}")
        a.vmem(f"buffer_store_dword v{DT+4*mt}, v{OR_}, s[28:31], s20 offen sc1")
    a("s_mov_b64 exec, -1")
    pstamp(a, 3)
    a.wait(vm=ring.t[(23, 2)])
    for ks in range(18):
        for mt in range(4):
            d = QA + 4 * mt
            c = "0" if ks == 0 else f"v[{d}:{d+3}]"
            a(f"v_mfma_f32_16x16x32_bf16 v[{d}:{d+3}], {ring.reg(18 + ks // 3, ks % 3)}, {breg(ks, mt)}, {c}")
    a("s_lshl_b32 s20, s3, 1\ns_lshr_b32 s21, s6, 1\ns_add_u32 s20, s20, s21\ns_lshl_b32 s20, s20, 10")
    a("s_and_b32 s21, s6, 1\ns_lshl_b32 s21, s21, 3\ns_add_u32 s20, s20, s21")
    a(f"v_add_u32 v{OQ}, s20, v2")
    last = None
    T1, T2 = 212, 220
    for h in range(2):
        prs = []
        for i in range(4):
            mt = 2 * h + (i >> 1)
            c = C1 + (mt & ~1)
            sel = "op_sel_hi:[1,0]" if mt % 2 == 0 else "op_sel:[0,1]"
            prs.append((QA + 8 * h + 2 * i, f"v[{c}:{c+1}] {sel}", QA + 4 * h + i, T1 + 2 * i, T2 + 2 * i))
        phi_pairs(a, prs, "1.0 op_sel_hi:[1,1,0]")
        for mt in (2 * h, 2 * h + 1):
            a(f"s_mov_b32 s20, {mt*16384}")
            last = a.vmem(f"buffer_store_dwordx2 v[{QA+2*mt}:{QA+2*mt+1}], v{OQ}, s[16:19], s20 offen sc1")
    return last


def o_prefetch(a):
    a(f"s_mul_i32 s24, s54, {162*1024}\ns_add_u32 s24, s24, {OFF_WOP}")
    srd(a, 28, "s4", "s5", "s24", 162 * 1024)
    a("s_mul_i32 s20, s6, 36864")
    for i in range(36):
        if i % 4 == 0 and i:
            a("s_add_u32 s20, s20, 4096")
        a.vmem(f"buffer_load_dwordx4 a[{4*i}:{4*i+3}], v2, s[28:31], s20 offen offset:{(i%4)*1024}")
    a(f"s_mul_i32 s21, s53, 36864\ns_add_u32 s22, s21, {L_XA}\ns_add_u32 s21, s21, {L_XB}")
    srd(a, 32, "s48", "s49", "s22", 36864)
    srd(a, 36, "s48", "s49", "s21", 36864)
    a("s_mul_i32 s40, s54, 9\ns_add_u32 s40, s40, 1\ns_lshr_b32 s40, s40, 1\ns_add_u32 s40, s40, s6\ns_lshl_b32 s40, s40, 10")
    a("s_add_u32 s41, s40, 18432")
    a("s_lshr_b32 s42, s54, 1\ns_mul_i32 s42, s42, 9\ns_add_u32 s42, s42, 4\ns_lshl_b32 s42, s42, 10")
    a("s_and_b32 s43, s54, 1\ns_lshl_b32 s43, s43, 3\ns_add_u32 s42, s42, s43\ns_add_u32 s43, s42, 18432")
    for mt in range(2):
        a.vmem(f"buffer_load_dwordx4 a[{216+4*mt}:{216+4*mt+3}], v2, s[32:35], s{40+mt} offen sc1")


def grid_barrier(a, last_store):
    a.wait(vm=last_store)
    a("s_barrier")
    a("s_cmp_lg_u32 s6, 0\ns_cbranch_scc1 L_gb_done")
    a(f"s_lshl_b32 s20, s44, 10\ns_add_u32 s20, s20, {Z_GF}\ns_lshl_b32 s21, s2, 2\ns_add_u32 s21, s21, s20")
    a("v_mov_b32 v3, 1\ns_mov_b64 exec, 1")
    a("buffer_store_dword v3, off, s[56:59], s21 sc1")
    a("s_mov_b64 exec, -1")
    a(f"s_mov_b32 s21, {144*1024}")
    for i in range(18):
        if i % 4 == 0 and i:
            a("s_add_u32 s21, s21, 4096")
        a(f"buffer_load_dwordx4 a[{144+4*i}:{144+4*i+3}], v2, s[28:31], s21 offen offset:{(i%4)*1024}")
    for mt in range(2):
        a(f"buffer_load_dwordx2 a[{224+2*mt}:{224+2*mt+1}], v2, s[32:35], s{42+mt} offen sc1")
    a(f"s_mov_b32 s21, {SPIN_MAX}")
    a("L_gb_spin:")
    a("buffer_load_dwordx4 v[4:7], v2, s[56:59], s20 offen sc1")
    a("s_waitcnt vmcnt(0)")
    a("v_and_b32 v4, v4, v5\nv_and_b32 v6, v6, v7\nv_and_b32 v4, v4, v6")
    a("v_cmp_ne_u32 vcc, 0, v4")
    a("s_sub_u32 s21, s21, 1\ns_nop 0")
    a("s_cmp_eq_u64 vcc, exec\ns_cbranch_scc1 L_gb_done")
    a("s_cmp_lg_u32 s21, 0\ns_cbranch_scc1 L_gb_spin")
    a("L_gb_done:")
    a("s_barrier")


def phase_o_setup(a):
    a(f"s_mul_i32 s21, s6, 12288\ns_mul_i32 s22, s44, 49152\ns_add_u32 s21, s21, s22\ns_add_u32 s21, s21, {OFF_Z+Z_KV}")
    srd(a, 8, "s4", "s5", "s21", 12288)
    a(f"s_lshl_b32 s22, s53, 15\ns_add_u32 s22, s22, {L_PQM}")
    srd(a, 12, "s48", "s49", "s22", 32768)
    a(f"s_lshl_b32 s23, s53, 12\ns_add_u32 s23, s23, {L_QREM}")
    srd(a, 16, "s48", "s49", "s23", 4096)
    a("v_lshlrev_b32 v252, 2, v1")
    a("v_and_b32 v253, 3, v1\nv_lshrrev_b32 v254, 4, v1\nv_lshl_add_u32 v253, v254, 2, v253")
    a("v_and_b32 v254, 12, v1\nv_lshl_add_u32 v253, v254, 2, v253\nv_lshlrev_b32 v253, 2, v253")
    a("v_lshlrev_b32 v254, 3, v1")


def phase_o(a, ring):
    KVR, BR, A12, D1, D2 = 8, 56, 108, 172, 236
    kvt = {}
    a(f"s_and_b32 s20, s2, 7\ns_lshl_b32 s20, s20, 7\ns_add_u32 s20, s20, {Z_XM}")
    xm = a.vmem("buffer_load_dword v3, off, s[56:59], s20 sc1")
    for G in range(2):
        b = KVR + 24 * G
        a(f"s_mov_b32 s20, {6144*G+4096}")
        for r in range(4):
            a.vmem(f"buffer_load_dword v{b+16+r}, v253, s[8:11], s20 offen offset:{r*256} sc1")
        for r in range(4):
            a.vmem(f"buffer_load_dword v{b+20+r}, v252, s[8:11], s20 offen offset:{1024+r*256} sc1")
        a(f"s_mov_b32 s20, {6144*G}")
        for i in range(16):
            kvt[G] = a.vmem(f"buffer_load_dword v{b+i}, v252, s[8:11], s20 offen offset:{i*256} sc1")
    a("s_lshl_b32 s20, s6, 9")
    for mt in range(2):
        b = BR + 26 * mt
        a.vmem(f"buffer_load_dwordx2 v[{b}:{b+1}], v254, s[16:19], s20 offen offset:{mt*2048} sc1")
    for mt in range(2):
        a(f"s_lshl_b32 s20, s6, 12\ns_add_u32 s20, s20, {mt*16384}")
        for q in range(4):
            b = BR + 26 * mt + 6 * q + 2
            pqt = a.vmem(f"buffer_load_dwordx4 v[{b}:{b+3}], v2, s[12:15], s20 offen offset:{q*1024} sc1")
    M1, M0 = 12, 20

    def aslots(hh):
        G = hh >> 2
        if hh & 1 == 0:
            return 2, G, 1 - G
        return 0, 2 + G, 3 - G
    for hh in range(8):
        mb, ru, rz = aslots(hh)
        a(f"v_mov_b32 v{A12+8*hh+rz}, 0\nv_mov_b32 v{A12+8*hh+4+rz}, 0")
    a(f"s_lshl_b32 s20, s6, 13\ns_add_u32 s20, s20, {HB}\nv_add_u32 v6, s20, v2")
    a(f"s_lshr_b32 s20, s6, 1\ns_lshl_b32 s20, s20, 11\ns_and_b32 s25, s6, 1\ns_lshl_b32 s25, s25, 3\ns_add_u32 s20, s20, s25\ns_add_u32 s20, s20, {HB+32768}")
    a(f"v_add_u32 v7, s20, v2\nv_add_u32 v5, {HB}, v2")
    for j in range(4):
        m1 = 0x000f000f << (4 * j)
        a(f"s_mov_b32 s{M1+2*j}, {m1}\ns_mov_b32 s{M1+1+2*j}, {m1}")
        m0 = 0xffff << (16 * ((j + 1) & 3))
        a(f"s_mov_b32 s{M0+2*j}, {m0 & 0xffffffff}\ns_mov_b32 s{M0+1+2*j}, {m0 >> 32}")
    for G in range(2):
        b = KVR + 24 * G
        a.wait(vm=kvt[G])
        if G == 0:
            pstamp(a, 6)
            a("v_readfirstlane_b32 s45, v3")
        a(f"v_cvt_pk_bf16_f32 v{b+16}, v{b+16}, v{b+17}")
        a(f"v_cvt_pk_bf16_f32 v{b+17}, v{b+18}, v{b+19}")
        a(f"v_cvt_pk_bf16_f32 v{b+20}, v{b+20}, v{b+21}")
        a(f"v_cvt_pk_bf16_f32 v{b+22}, v{b+22}, v{b+23}")
        if G == 0:
            a("s_bcnt1_i32_b32 s45, s45")
            if FORCE_SLOW:
                a("s_mov_b32 s45, 2")
        for j in range(4):
            hh = 4 * G + j
            mb, ru, rz = aslots(hh)
            a1, a2 = A12 + 8 * hh, A12 + 8 * hh + 4
            a(f"v_cvt_pk_bf16_f32 v{a1+mb}, v{b+4*j}, v{b+4*j+1}")
            a(f"v_cvt_pk_bf16_f32 v{a1+mb+1}, v{b+4*j+2}, v{b+4*j+3}")
            a(f"v_cndmask_b32 v{a1+ru}, 0, v{b+20}, s[{M0+2*j}:{M0+1+2*j}]")
            a(f"v_cndmask_b32 v{a2+mb}, 0, v{b+16}, s[{M1+2*j}:{M1+1+2*j}]")
            a(f"v_cndmask_b32 v{a2+mb+1}, 0, v{b+17}, s[{M1+2*j}:{M1+1+2*j}]")
            a(f"v_cndmask_b32 v{a2+ru}, 0, v{b+22}, s[{M1+2*j}:{M1+1+2*j}]")
    a.wait(vm=pqt)
    for mt in range(2):
        b = BR + 26 * mt
        for q in range(1, 5):
            a(f"v_mov_b64 v[{b+6*q}:{b+6*q+1}], v[{b}:{b+1}]")

    def bop(hh, mt):
        q = hh >> 1
        b = BR + 26 * mt + 6 * q + (0 if hh & 1 == 0 else 4)
        return f"v[{b}:{b+3}]"
    for hh in range(8):
        for mt in range(2):
            d = D2 + 8 * (hh >> 2) + 4 * mt
            c = "0" if hh & 3 == 0 else f"v[{d}:{d+3}]"
            a2 = A12 + 8 * hh + 4
            a(f"v_mfma_f32_16x16x32_bf16 v[{d}:{d+3}], v[{a2}:{a2+3}], {bop(hh,mt)}, {c}")
    RC, ORM = 8, 24
    post = []
    for G in range(2):
        for mt in range(2):
            d, rc = D2 + 8 * G + 4 * mt, RC + 8 * G + 4 * mt
            post += [f"v_add_f32 v{rc}, {EPS_6}, v{d+3}"]
    for i in range(4):
        post += [f"v_rcp_f32 v{RC+4*i}, v{RC+4*i}"]
    for G in range(2):
        for mt in range(2):
            d, rc = D2 + 8 * G + 4 * mt, RC + 8 * G + 4 * mt
            post += [f"v_mov_b32 v{rc+1}, v{rc}", f"v_mul_f32 v{d}, v{d}, v{rc}", f"v_mul_f32 v{d+1}, v{d+1}, v{rc}"]
    for i in range(4):
        post += [f"v_permlane16_swap_b32 v{RC+4*i}, v{RC+4*i+1}"]
    n = 0
    for hh in range(8):
        for mt in range(2):
            d = D1 + 8 * hh + 4 * mt
            a1 = A12 + 8 * hh
            a(f"v_mfma_f32_16x16x32_bf16 v[{d}:{d+3}], v[{a1}:{a1+3}], {bop(hh,mt)}, 0")
            n += 1
            if n >= 5:
                for _ in range(2):
                    a(post.pop(0))
    assert not post
    for i in range(4):
        rc = RC + 4 * i
        a(f"v_mov_b64 v[{rc+2}:{rc+3}], v[{rc}:{rc+1}]")
    for G in range(2):
        for mt in range(2):
            d = D2 + 8 * G + 4 * mt
            a(f"v_cvt_pk_bf16_f32 v{ORM+2*mt+G}, v{d}, v{d+1}")
    for i in range(4):
        rc = RC + 4 * i
        a(f"v_permlane32_swap_b32 v{rc}, v{rc+2}")
        a(f"v_permlane32_swap_b32 v{rc+1}, v{rc+3}")
    for mt in range(2):
        a.ds(f"ds_write_b64 v7, v[{ORM+2*mt}:{ORM+2*mt+1}] offset:{mt*1024}")
    OF = 28
    n = 0
    for q in range(4):
        for mt in range(2):
            o = OF + 4 * (n % 4)
            n += 1
            for s in range(2):
                hh = 2 * q + s
                d = D1 + 8 * hh + 4 * mt
                rc = RC + 8 * (hh >> 2) + 4 * mt + (hh & 2)
                sel = "op_sel_hi:[1,0]" if s == 0 else "op_sel:[0,1]"
                a(f"v_pk_mul_f32 v[{d}:{d+1}], v[{d}:{d+1}], v[{rc}:{rc+1}] {sel}")
                a(f"v_pk_mul_f32 v[{d+2}:{d+3}], v[{d+2}:{d+3}], v[{rc}:{rc+1}] {sel}")
            for s in range(2):
                d = D1 + 8 * (2 * q + s) + 4 * mt
                a(f"v_cvt_pk_bf16_f32 v{o+2*s}, v{d}, v{d+1}")
                a(f"v_cvt_pk_bf16_f32 v{o+2*s+1}, v{d+2}, v{d+3}")
            a.ds(f"ds_write_b128 v6, v[{o}:{o+3}] offset:{(2*q+mt)*1024}")
    a.wait_lg0()
    a("s_barrier")
    pstamp(a, 7)
    def oreg(i):
        r = 8 + 4 * i if i < 33 else 240 + 4 * (i - 33)
        return f"v[{r}:{r+3}]"
    ACC = 212
    ot = {}
    for i in range(12):
        ot[i] = a.ds(f"ds_read_b128 {oreg(i)}, v5 offset:{i*1024}")
    f_ring_setup(a, ring)
    nxt = 12
    for ks in range(18):
        a.wait(lg=ot[2 * ks + 1])
        for hf in range(2):
            for mt in range(2):
                d = ACC + 8 * hf + 4 * mt
                w = 4 * (2 * ks + hf)
                c = "0" if ks == 0 else f"v[{d}:{d+3}]"
                a(f"v_mfma_f32_16x16x32_bf16 v[{d}:{d+3}], a[{w}:{w+3}], {oreg(2*ks+mt)}, {c}")
                if nxt < 36 and mt == 0:
                    ot[nxt] = a.ds(f"ds_read_b128 {oreg(nxt)}, v5 offset:{nxt*1024}")
                    nxt += 1
    a("s_cmp_lg_u32 s6, 0\ns_cbranch_scc1 L_o_noh")
    for ks in range(18):
        for mt in range(2):
            d = ACC + 16 + 4 * mt
            w = 144 + 4 * ks
            c = "0" if ks == 0 else f"v[{d}:{d+3}]"
            a(f"v_mfma_f32_16x16x32_bf16 v[{d}:{d+3}], a[{w}:{w+3}], {oreg(2*ks+mt)}, {c}")
    for mt in range(2):
        d = ACC + 16 + 4 * mt
        for j in range(2):
            a(f"v_accvgpr_read_b32 v{8+j}, a{224+2*mt+j}")
        for j in range(2):
            a(f"v_lshlrev_b32 v{10+2*j}, 16, v{8+j}\nv_and_b32 v{11+2*j}, 0xffff0000, v{8+j}")
        for r in range(4):
            a(f"v_add_f32 v{d+r}, v{d+r}, v{10+r}")
        a(f"v_cvt_pk_bf16_f32 v{d}, v{d}, v{d+1}\nv_cvt_pk_bf16_f32 v{d+1}, v{d+2}, v{d+3}")
        a(f"buffer_store_dwordx2 v[{d}:{d+1}], v2, s[36:39], s{42+mt} offen")
    a("L_o_noh:")
    last = None
    for mt in range(2):
        t = 16 + 16 * mt
        for j in range(4):
            a(f"v_accvgpr_read_b32 v{t+j}, a{216+4*mt+j}")
        for j in range(4):
            a(f"v_lshlrev_b32 v{t+4+2*j}, 16, v{t+j}\nv_and_b32 v{t+5+2*j}, 0xffff0000, v{t+j}")
        for hf in range(2):
            d = ACC + 8 * hf + 4 * mt
            for r in (0, 2):
                a(f"v_pk_add_f32 v[{t+4+4*hf+r}:{t+5+4*hf+r}], v[{d+r}:{d+r+1}], v[{t+4+4*hf+r}:{t+5+4*hf+r}]")
        for j in range(4):
            a(f"v_cvt_pk_bf16_f32 v{t+j}, v{t+4+2*j}, v{t+5+2*j}")
        last = a.vmem(f"buffer_store_dwordx4 v[{t}:{t+3}], v2, s[36:39], s{40+mt} offen")
    return last


def phase_f(a, ring):
    a(f"s_mul_i32 s21, s7, 73728\ns_add_u32 s22, s21, {L_XB}")
    srd(a, 12, "s48", "s49", "s22", 73728)
    xt = dma_x_tile(a, 12)
    ACC, TMP = 44, 212
    VH0, VH1, VW0, VW1, VP0, VP1, VST = 5, 6, 7, 8, 9, 10, 11
    sp = stats_plan(a, ACC + 48, None)
    sp["init"]()
    a("v_add_u32 v3, 36864, v2")
    a(f"v_add_u32 v{VH0}, {HB}, v2\nv_add_u32 v{VH1}, {HB+36864}, v2")
    a(f"s_lshl_b32 s20, s6, 12\nv_add_u32 v{VW0}, s20, v{VH0}")
    a("s_lshr_b32 s24, s6, 1\ns_add_u32 s24, s24, 4\ns_and_b32 s25, s6, 1\ns_lshl_b32 s25, s25, 3")
    a(f"s_lshl_b32 s20, s24, 12\ns_add_u32 s20, s20, s25\nv_add_u32 v{VW1}, s20, v{VH0}")
    a(f"s_lshl_b32 s20, s6, 10\nv_add_u32 v{VP0}, s20, v2")
    a(f"s_lshl_b32 s20, s24, 10\ns_add_u32 s20, s20, s25\nv_add_u32 v{VP1}, s20, v2")
    a(f"s_mul_i32 s22, s3, {XF_BYTES}\ns_add_u32 s22, s22, s21\ns_add_u32 s22, s22, {L_PART}")
    srd(a, 16, "s48", "s49", "s22", 73728)
    a(f"v_and_b32 v{VST}, 15, v1\nv_lshlrev_b32 v{VST}, 3, v{VST}\nv_add_u32 v{VST}, {STAT}, v{VST}")
    CS = TMP
    ST1 = TMP + 8
    PK = TMP + 16
    T = sp["T"]

    def publish():
        a(f"v_mul_f32 v{T+1}, v{sp['VAR']}, v{sp['RS']}")
        a(f"v_mul_f32 v{T}, {NLOG2E}, v{sp['RS']}")
        a(f"s_lshl_b32 s20, s6, 7\nv_add_u32 v{T+2}, s20, v{VST}")
        a("s_mov_b64 exec, s[42:43]")
        a.ds(f"ds_write_b64 v{T+2}, v[{T}:{T+1}]")
        a("s_mov_b64 exec, -1")

    def readback():
        for mt in range(4):
            readback.last = a.ds(f"ds_read_b64 v[{CS+2*mt}:{CS+2*mt+1}], v{VST} offset:{128*mt}")
    br = {}

    def hread(ks, mt):
        base = f"v{VH0}" if ks < 9 else f"v{VH1}"
        br[(ks, mt)] = a.ds(f"ds_read_b128 {breg(ks,mt)}, {base} offset:{((ks%9)*4+mt)*1024}")

    def silu_fill(st, p):
        out = []
        for mt in range(4):
            pk = PK + 6 * (mt % 2)
            for t in range(3):
                d = ACC + 48 * st + (t * 4 + mt) * 4
                tm = ST1 + 4 * ((mt * 3 + t) % 2)
                c1, sd = CS + 2 * mt, CS + 2 * mt + 1
                out += [f"v_mul_f32 v{tm+r}, v{d+r}, v{c1}" for r in range(4)]
                out += [f"v_exp_f32 v{tm+r}, v{tm+r}" for r in range(4)]
                out += [f"v_fma_f32 v{tm+r}, v{tm+r}, v{sd}, v{sd}" for r in range(4)]
                out += [f"v_rcp_f32 v{tm+r}, v{tm+r}" for r in range(4)]
                out += [f"v_mul_f32 v{tm+r}, v{d+r}, v{tm+r}" for r in range(4)]
                out += [f"v_cvt_pk_bf16_f32 v{pk+2*t}, v{tm}, v{tm+1}", f"v_cvt_pk_bf16_f32 v{pk+2*t+1}, v{tm+2}, v{tm+3}"]
                if t == 1:
                    out.append(("ds", f"ds_write_b128 v{VW0}, v[{pk}:{pk+3}] offset:{p*24576+mt*1024}"))
                if t == 2:
                    out.append(("ds", f"ds_write_b64 v{VW1}, v[{pk+4}:{pk+5}] offset:{p*24576+mt*1024}"))
        return out

    def store_fill(st, p):
        out = []
        for mt in range(4):
            pk = PK + 6 * (mt % 2)
            out.append(f"s_mov_b32 s{28+mt}, {mt*18432+p*6144}")
            for t in range(3):
                d = ACC + 48 * st + (t * 4 + mt) * 4
                out += [f"v_cvt_pk_bf16_f32 v{pk+2*t}, v{d}, v{d+1}", f"v_cvt_pk_bf16_f32 v{pk+2*t+1}, v{d+2}, v{d+3}"]
                if t == 1:
                    out.append(("vm", f"buffer_store_dwordx4 v[{pk}:{pk+3}], v{VP0}, s[16:19], s{28+mt} offen"))
                if t == 2:
                    out.append(("vm", f"buffer_store_dwordx2 v[{pk+4}:{pk+5}], v{VP1}, s[16:19], s{28+mt} offen"))
        return out

    def emit(f):
        if isinstance(f, tuple):
            return (a.ds if f[0] == "ds" else a.vmem)(f[1])
        a(f)

    def cost(f):
        if isinstance(f, tuple):
            return 1
        return 2 if f.startswith(("v_exp", "v_rcp")) else 1

    a.wait(vm=xt)
    a("s_barrier")
    pstamp(a, 10)
    pass0(a, ring, 108, lambda t, mt: ACC + (t * 4 + mt) * 4, False, sp, publish, readback, [])
    for ps in range(1, 6):
        st = ps % 2
        fill = silu_fill(1 - st, ps - 1) if ps <= 3 else store_fill(1 - st, ps - 4)
        fsteps = {1: 17, 2: 15, 3: 9, 4: 12, 5: 12}[ps]
        total = sum(cost(f) for f in fill)
        spent = 0
        for ks in range(18):
            n = ps * 18 + ks
            a.wait(vm=ring.t[(n, 2)], lg=br[(ks, 3)] if ps == 3 else None)
            pre = []
            if (ps == 2 and ks == 16) or (ps == 3 and ks == 10):
                assert not fill
                a.wait_lg0()
                a("s_barrier")
            if ps == 2 and ks >= 16:
                pre += [lambda mt=mt: hread(ks - 16, mt) for mt in range(4)]
            elif ps == 3 and ks + 2 < 18:
                pre += [lambda mt=mt: hread(ks + 2, mt) for mt in range(4)]
            i = 0
            for t in range(3):
                for mt in range(4):
                    d = ACC + 48 * st + (t * 4 + mt) * 4
                    c = "0" if ks == 0 else f"v[{d}:{d+3}]"
                    a(f"v_mfma_f32_16x16x32_bf16 v[{d}:{d+3}], {ring.reg(n,t)}, {breg(ks,mt)}, {c}")
                    i += 1
                    if pre:
                        pre.pop(0)()
                    if not (ks == 0 and i < 3):
                        target = total * (ks * 12 + i) / (fsteps * 12)
                        while fill and spent < target:
                            f = fill.pop(0)
                            spent += cost(f)
                            emit(f)
                if n + RD < 108:
                    ring.load(n + RD, t)
            assert not pre
        assert not fill, (ps, len(fill))
        if ps == 2:
            pstamp(a, 11)
    last = None
    for f in store_fill(1, 2):
        r = emit(f)
        last = r or last
    return last


def phase_r_setup(a):
    a(f"s_mul_i32 s21, s7, 73728\ns_add_u32 s22, s21, {L_XB}")
    srd(a, 12, "s48", "s49", "s22", 73728)
    a(f"s_add_u32 s22, s21, {L_PART}")
    srd(a, 16, "s48", "s49", "s22", 7 * XF_BYTES + 73728)
    a(f"s_add_u32 s22, s48, {L_STRIDE+L_XA}\ns_addc_u32 s23, s49, 0")
    a("s_cmp_eq_u32 s44, 0\ns_cselect_b32 s22, s22, s46\ns_cselect_b32 s23, s23, s47\ns_cselect_b32 s27, 1024, 64\ns_cselect_b64 vcc, -1, 0")
    srd(a, 28, "s22", "s23", "s21", 73728)
    a("s_mul_i32 s20, s3, 9\ns_lshl_b32 s22, s6, 1\ns_add_u32 s22, s22, s20\ns_lshl_b32 s22, s22, 10\nv_add_u32 v5, s22, v2")
    a("s_add_u32 s22, s20, 8\ns_lshl_b32 s22, s22, 10\ns_lshl_b32 s23, s6, 8\ns_add_u32 s22, s22, s23\nv_lshl_add_u32 v6, v1, 2, s22")
    a("s_lshr_b32 s22, s3, 1\ns_mul_i32 s22, s22, 18432\ns_and_b32 s23, s3, 1\ns_mul_i32 s23, s23, 576\ns_add_u32 s22, s22, s23")
    a("v_and_b32 v7, 15, v1\nv_mul_u32_u24 v7, 1152, v7\nv_lshrrev_b32 v8, 4, v1\nv_lshl_add_u32 v7, v8, 4, v7")
    a("s_lshl_b32 s23, s6, 7\ns_add_u32 s23, s23, s22\nv_add_u32 v7, s23, v7")
    a("v_lshrrev_b32 v8, 2, v1\nv_mul_u32_u24 v8, 1152, v8\nv_and_b32 v9, 3, v1\nv_lshl_add_u32 v8, v9, 2, v8")
    a("s_lshl_b32 s23, s6, 4\ns_add_u32 s23, s23, s22\ns_add_u32 s23, s23, 512\nv_add_u32 v8, s23, v8")
    a("v_cndmask_b32 v7, v7, v5, vcc\nv_cndmask_b32 v8, v8, v6, vcc")


def phase_r(a):
    LD, S, T = 12, 104, 122
    tk = []
    for f in range(9):
        b = LD + 10 * f
        if f == 0:
            d, so = "s[12:15]", "0"
        else:
            d, so = "s[16:19]", "s20"
            a(f"s_mov_b32 s20, {(f-1)*XF_BYTES}")
        a.vmem(f"buffer_load_dwordx4 v[{b}:{b+3}], v5, {d}, {so} offen sc1")
        a.vmem(f"buffer_load_dwordx4 v[{b+4}:{b+7}], v5, {d}, {so} offen offset:1024 sc1")
        tk.append(a.vmem(f"buffer_load_dword v{b+8}, v6, {d}, {so} offen sc1"))
    for f in range(9):
        a.wait(vm=tk[f])
        b = LD + 10 * f
        o = S if f == 0 else T
        for j in range(9):
            a(f"v_lshlrev_b32 v{o+2*j}, 16, v{b+j}\nv_and_b32 v{o+2*j+1}, 0xffff0000, v{b+j}")
        if f:
            for j in range(9):
                a(f"v_pk_add_f32 v[{S+2*j}:{S+2*j+1}], v[{S+2*j}:{S+2*j+1}], v[{T+2*j}:{T+2*j+1}]")
    for j in range(9):
        a(f"v_cvt_pk_bf16_f32 v{S+j}, v{S+2*j}, v{S+2*j+1}")
    a.vmem(f"buffer_store_dwordx4 v[{S}:{S+3}], v7, s[28:31], 0 offen")
    a.vmem(f"buffer_store_dwordx4 v[{S+4}:{S+7}], v7, s[28:31], s27 offen")
    return a.vmem(f"buffer_store_dword v{S+8}, v8, s[28:31], 0 offen")


def save_stamps(a):
    if not STAMP:
        return
    a("s_waitcnt lgkmcnt(0)")
    a("s_lshl_b32 s20, s44, 4")
    for i in range(15):
        a(f"s_add_u32 m0, s20, {i}\ns_nop 0\nv_writelane_b32 v255, s{60+2*i}, m0")


def kp():
    a = Asm()
    name = "p_kernel"
    a(f".globl {name}\n.p2align 8\n.type {name},@function\n{name}:")
    a(f"s_cmp_ge_u32 s2, 256\ns_cbranch_scc1 L_{name}_end")
    if STAMP:
        a(f"{STAMPOP} s[92:93]\nv_mov_b32 v255, 0")
        for i in range(30):
            a(f"s_mov_b32 s{60+i}, 0")
    a("s_load_dwordx2 s[4:5], s[0:1], 64")
    a("s_load_dwordx2 s[46:47], s[0:1], 48")
    a("v_lshrrev_b32 v1, 6, v0")
    a("v_readfirstlane_b32 s6, v1")
    a("v_and_b32 v1, 63, v0")
    a("v_lshlrev_b32 v2, 4, v1")
    a("s_and_b32 s7, s2, 7\ns_lshl_b32 s7, s7, 2\ns_lshr_b32 s3, s2, 3\ns_and_b32 s20, s3, 3\ns_add_u32 s7, s7, s20\ns_lshr_b32 s3, s3, 2")
    a("s_lshl_b32 s53, s7, 1\ns_and_b32 s20, s3, 1\ns_add_u32 s53, s53, s20\ns_lshr_b32 s54, s3, 1")
    a(f"s_lshl_b32 s51, s7, 7\ns_add_u32 s51, s51, {Z_CF}")
    a("s_lshl_b32 s52, s3, 2\ns_add_u32 s52, s52, s6\ns_lshl_b32 s52, s52, 2\ns_add_u32 s52, s52, s51")
    a("s_mov_b32 s44, 0\ns_mov_b32 s45, 0")
    a("s_getreg_b32 s20, hwreg(HW_REG_XCC_ID, 0, 4)\ns_lshl_b32 s20, 1, s20\nv_mov_b32 v3, s20")
    a("s_waitcnt lgkmcnt(0)")
    a(f"s_add_u32 s48, s4, {OFF_L}\ns_addc_u32 s49, s5, 0")
    srd(a, 56, "s4", "s5", OFF_Z, Z_BYTES)
    ring = Ring(a)
    q_ring_setup(a, ring)
    a(f"s_and_b32 s20, s2, 7\ns_lshl_b32 s20, s20, 7\ns_add_u32 s20, s20, {Z_XM}")
    a("s_mov_b64 exec, 1")
    a.vmem("buffer_atomic_or v3, off, s[56:59], s20")
    a("s_mov_b64 exec, -1")

    def lim(ph):
        if LIMIT and LIMIT[1] == ph:
            a("s_waitcnt vmcnt(0)")
            a(f"s_cmp_eq_u32 s44, {LIMIT[0]}\ns_cbranch_scc1 L_{name}_fin")
    a("L_layer:")
    last = phase_q(a, ring)
    o_prefetch(a)
    phase_o_setup(a)
    pstamp(a, 4)
    lim("q")
    grid_barrier(a, last)
    pstamp(a, 5)
    ring = Ring(a)
    last = phase_o(a, ring)
    pstamp(a, 8)
    lim("o")
    cluster_signal(a, 0, last)
    cluster_wait(a, "s51")
    pstamp(a, 9)
    last = phase_f(a, ring)
    pstamp(a, 12)
    lim("f")
    ring = Ring(a)
    q_ring_setup(a, ring)
    phase_r_setup(a)
    cluster_signal(a, 1, last)
    a("s_add_u32 s22, s51, 4096")
    cluster_wait(a, "s22")
    pstamp(a, 13)
    last = phase_r(a)
    pstamp(a, 14)
    lim("r")
    a(f"s_cmp_eq_u32 s44, 1\ns_cbranch_scc1 L_{name}_fin")
    cluster_signal(a, 2, last)
    save_stamps(a)
    a("s_add_u32 s22, s51, 8192")
    cluster_wait(a, "s22")
    a(f"s_mov_b32 s44, 1\ns_add_u32 s48, s48, {L_STRIDE}\ns_addc_u32 s49, s49, 0")
    a("s_add_u32 s51, s51, 12288\ns_add_u32 s52, s52, 12288")
    a("s_branch L_layer")
    a(f"L_{name}_fin:")
    if STAMP:
        save_stamps(a)
        a("s_waitcnt vmcnt(0)")
        a(f"{STAMPOP} s[94:95]\ns_waitcnt lgkmcnt(0)")
        a("v_writelane_b32 v255, s92, 32\nv_writelane_b32 v255, s94, 33\nv_writelane_b32 v255, s45, 34")
        a(f"s_lshl_b32 s20, s2, 2\ns_add_u32 s20, s20, s6\ns_lshl_b32 s20, s20, 8\ns_add_u32 s20, s20, {OFF_STAMP+0x400000}")
        a("s_add_u32 s20, s4, s20\ns_addc_u32 s21, s5, 0\nv_lshlrev_b32 v3, 2, v1")
        a("global_store_dword v3, v255, s[20:21]")
    a(f"L_{name}_end:\ns_endpgm")
    return name, a, dict(nv=512, acc=256, ns=102), (256, 256, 147456 + 512)


HEADER = """; interleave_layers: 2 x (LN -> linear attention -> residual, LN -> SiLU FFN -> residual), S=2048 D=576 F=4608 H=32
"""


def build(delay=False):
    ks = {}
    for f in (k0, kp):
        name, a, kd, geo = f()
        ks[name] = (a, kd, geo)
    order = ["k0_kernel", "p_kernel"]
    s = HEADER
    if delay:
        s += "; @launch kernel=delay_kernel grid=(256,1,1) block=(64,1,1) lds=0\n"
    for n in order:
        g, b, l = ks[n][2]
        s += f"; @launch kernel={n} grid=({g},1,1) block=({b},1,1) lds={l}\n"
    s += '.amdgcn_target "amdgcn-amd-amdhsa--gfx950"\n.text\n'
    kd = '.section .rodata,"a"\n'
    if delay:
        s += ".globl delay_kernel\n.p2align 8\n.type delay_kernel,@function\ndelay_kernel:\ns_mov_b32 s4, 3000\nL_dl:\ns_sleep 4\ns_sub_u32 s4, s4, 1\ns_cmp_lg_u32 s4, 0\ns_cbranch_scc1 L_dl\ns_endpgm\n"
        kd += KD.format(name="delay_kernel", nv=8, acc=8, ns=16)
    for n, (a, d, geo) in ks.items():
        s += a.text()
        kd += KD.format(name=n, **d)
        sys.stderr.write(f"{n}: {len(a.lines)} lines, {a.nops} nops inserted\n")
    return s + kd


if __name__ == "__main__":
    out = sys.argv[1]
    opts = sys.argv[2:]
    if "stamp" in opts or "stampc" in opts:
        STAMP = True
    if "stampc" in opts:
        STAMPOP = "s_memtime"
    if "slow" in opts:
        FORCE_SLOW = True
    open(out, "w").write(build(delay=STAMP))
```

```python
import sys, os
sys.path.insert(0, os.path.dirname(os.path.abspath(__file__)))
from asm import *

OFF_WFP = 0x0
OFF_WQKVP = 0xA20000
OFF_WOP = 0xC60000
OFF_Z = 0xD10000
Z_BYTES = 0x28000
Z_KV = 0x0
Z_GF = 0x22000
Z_B0 = 0x26000
Z_XM = 0x18800
Z_CF = 0x19000
OFF_XA = 0xD40000
OFF_PART = 0x1000000
OFF_L = 0x2200000
L_STRIDE = 0x240000
L_PQM = 0x0
L_QREM = 0x200000
OFF_STAMP = 0x8000000
XF_BYTES = 0x240000
LOG2E = 0x3FB8AA3B
NLOG2E = 0xBFB8AA3B
INV576 = 0x3AE38E39
EPS_LN = 0x3727C5AC
EPS_6 = 0x358637BD

STAMP = False


def start(a, name, nwg):
    a(f".globl {name}\n.p2align 8\n.type {name},@function\n{name}:")
    a(f"s_cmp_ge_u32 s2, {nwg}\ns_cbranch_scc1 L_{name}_end")
    if STAMP:
        a("s_memrealtime s[92:93]\ns_memtime s[94:95]\ns_load_dwordx2 s[90:91], s[0:1], 56")
        for i in range(24):
            a(f"s_mov_b32 s{60+i}, 0")
    a("s_load_dwordx2 s[4:5], s[0:1], 64")
    a("v_lshrrev_b32 v1, 6, v0")
    a("v_readfirstlane_b32 s6, v1")
    a("v_and_b32 v1, 63, v0")
    a("v_lshlrev_b32 v2, 4, v1")


def stamp(a, i):
    if STAMP:
        a(f"{STAMPOP} s[{60+2*i}:{61+2*i}]")


def finish(a, name, nwaves):
    if STAMP:
        a("s_waitcnt vmcnt(0) lgkmcnt(0)")
        a("s_memrealtime s[96:97]\ns_memtime s[98:99]")
        a("s_lshr_b32 s90, s90, 9\ns_and_b32 s90, s90, 31\ns_lshl_b32 s90, s90, 19")
        a(f"s_mul_i32 s91, s2, {nwaves}\ns_add_u32 s91, s91, s6\ns_lshl_b32 s91, s91, 7")
        a(f"s_add_u32 s90, s90, s91\ns_add_u32 s90, s90, {OFF_STAMP}")
        a("s_add_u32 s90, s4, s90\ns_addc_u32 s91, s5, 0")
        a("s_waitcnt lgkmcnt(0)")
        a("s_mov_b64 exec, -1")
        for i in range(8):
            a(f"v_mov_b32 v{4+i}, s{92+i}")
        a("v_mov_b32 v3, 0")
        a("global_store_dwordx4 v3, v[4:7], s[90:91]")
        a("global_store_dwordx4 v3, v[8:11], s[90:91] offset:16")
        for q in range(6):
            for i in range(4):
                a(f"v_mov_b32 v{12+4*q+i}, s{60+4*q+i}")
            a(f"global_store_dwordx4 v3, v[{12+4*q}:{15+4*q}], s[90:91] offset:{32+16*q}")
    a(f"L_{name}_end:\ns_endpgm")


def srd(a, d, lo, hi, off, size):
    a(f"s_add_u32 s{d}, {lo}, {off}")
    a(f"s_addc_u32 s{d+1}, {hi}, 0")
    a(f"s_and_b32 s{d+1}, s{d+1}, 0xffff")
    a(f"s_mov_b32 s{d+2}, {size}")
    a(f"s_mov_b32 s{d+3}, 0x20000")


def xg_sum(a, x, t):
    a(f"v_mov_b32 v{t}, v{x}")
    a(f"v_permlane32_swap_b32 v{x}, v{t}")
    a(f"v_add_f32 v{x}, v{x}, v{t}")
    a(f"v_mov_b32 v{t}, v{x}")
    a(f"v_permlane16_swap_b32 v{x}, v{t}")
    a(f"v_add_f32 v{x}, v{x}, v{t}")


FW = (4, 3, 2, 3, 4, 2)
FBASE = (0, 72, 126, 162, 216, 288)


def w2_frow(hk, half):
    if hk < 8:
        u, t = hk >> 1, 2 * (hk & 1) + half
    elif hk < 12:
        u, t = hk - 8, 4 + half
    elif hk < 14:
        u, t = 2 * (hk - 12) + half, 6
    else:
        u, t = hk - 14, 7 + half
    return 144 * u + 16 * t


def f1_slot(t9):
    ps = 0 if t9 < 4 else (1 if t9 < 7 else 2)
    return FBASE[ps] + t9 - (0, 4, 7)[ps], FW[ps]


def f2_slot(p, hf):
    if p < 4:
        return p, FBASE[3] + hf, 3
    if p < 6:
        return 2 * (p - 4) + hf, FBASE[3] + 2, 3
    if p < 14:
        return (p - 6) >> 1, FBASE[4] + 2 * ((p - 6) & 1) + hf, 4
    return p - 14, FBASE[5] + hf, 2


def wo_slot(p, hf):
    if p in (4, 13):
        return (2 * (p == 13) + hf) * 162 + 144, 1
    ns = 0 if p < 4 else (1 if p < 9 else (2 if p < 13 else 3))
    return ns * 162 + (p - ((9 * ns + 1) >> 1)) * 36 + hf, 2


def main0(h):
    return 2 * (h & 1)


def rem0(h):
    return 0 if h & 1 else 16


K0_NT = "nt"
K0_SC = "sc1"


def k0_table():
    T = []
    for b in range(177):
        for w in range(4):
            if b < 24:
                sidx = 3 * (b & 7) + (b >> 3)
                ty, h = sidx >> 3, 4 * (sidx & 7) + w
                first, st = ((36, 1), (0, 2), (1, 2))[ty]
                T.append((OFF_WQKVP + h * 73728 + first * 1024, st * 1024, 144 * sidx, OFF_WQKVP + h * 73728 + 55296 + ty * 2304))
            elif b < 96:
                t = 4 * (b - 24) + w
                first, st = f1_slot(t % 9)
                T.append((OFF_WFP + ((t // 9) * 324 + first) * 1024, st * 1024, 128 * (b - 24), 9216))
            elif b < 168:
                fs, cs = divmod(b - 96, 9)
                wv, first, st = f2_slot(2 * cs + (w >> 1), w & 1)
                T.append((OFF_WFP + ((fs * 4 + wv) * 324 + first) * 1024, st * 1024, fs * 576 * 1152 + cs * 128, 1152))
            else:
                cs = b - 168
                first, st = wo_slot(2 * cs + (w >> 1), w & 1)
                T.append((OFF_WOP + first * 1024, st * 1024, cs * 128, 1152))
    return T


LN2 = 0x3F317218
SPIN_MAX = 1 << 17
STAMPOP = "s_memrealtime"
LIMIT = None
FORCE_SLOW = False
PSC = ""
HELP = False
FTWAIT = False

RING, NS = 156, 18
BXV = 12
HB, STAT = 73728, 156672
NAME = "interleave_layers__linear_attn_block__dense_activation_silu__prompt_kernel"


def pstamp(a, i):
    if STAMP:
        a(f"{STAMPOP} s[{60+2*i}:{61+2*i}]")


def breg(ks, mt):
    i = ks * 4 + mt
    return ar(4 * i, 4) if i < 64 else vr(BXV + 4 * (i - 64), 4)


def dma_x_tile(a, srdx):
    a("s_mul_i32 s20, s6, 18432")
    a("v_mov_b32 v249, v2\nv_add_u32 v250, 1024, v2")
    last = None
    for i in range(18):
        if i % 4 == 0:
            if i:
                a("s_add_u32 s20, s20, 4096")
            a("s_mov_b32 m0, s20")
        last = a.vmem(f"buffer_load_dwordx4 v2, s[{srdx}:{srdx+3}], s20 offen offset:{(i%4)*1024} sc1 lds")
    return last


class Ring:
    def __init__(self, a, total):
        self.a = a
        self.t = {}
        self.total = total

    def reg(self, i):
        r = RING + (i % NS) * 4
        return f"v[{r}:{r+3}]"

    def load(self, i):
        if i >= self.total:
            return
        if i % 4 == 0 and i:
            self.a("s_add_u32 s26, s26, 4096")
        self.t[i] = self.a.vmem(f"buffer_load_dwordx4 {self.reg(i)}, v2, s[8:11], s26 offen offset:{(i%4)*1024} sc1")

    def prefill(self):
        self.a("s_mov_b32 s26, 0")
        for i in range(NS):
            self.load(i)


class QRing(Ring):
    def load(self, i):
        if i >= self.total:
            return
        if i < 54 and i % 3 == 2:
            self.t[i] = self.a.vmem(f"buffer_load_dwordx4 {self.reg(i)}, v11, s[8:11], 0 offen offset:{(i//3)*128} sc1")
            return
        j = (i // 3) * 2 + i % 3 if i < 54 else i - 18
        if j % 4 == 0 and j:
            self.a("s_add_u32 s26, s26, 4096")
        self.t[i] = self.a.vmem(f"buffer_load_dwordx4 {self.reg(i)}, v2, s[8:11], s26 offen offset:{(j%4)*1024} sc1")


def q_lane_setup(a):
    a("s_add_u32 s20, s6, 1\ns_and_b32 s20, s20, 3\ns_lshl_b32 s20, s20, 1\ns_add_u32 s21, s20, 1\ns_lshl_b32 s22, s6, 1")
    a("v_bfe_u32 v3, v1, 1, 3\nv_mov_b32 v11, 0x100000")
    a(f"v_mov_b32 v4, {55296+2*2304}\nv_cmp_eq_u32 vcc, s22, v3\nv_cndmask_b32 v11, v11, v4, vcc")
    a(f"v_mov_b32 v4, {55296+2304}\nv_cmp_eq_u32 vcc, s20, v3\nv_cndmask_b32 v11, v11, v4, vcc")
    a(f"v_mov_b32 v4, {55296}\nv_cmp_eq_u32 vcc, s21, v3\nv_cndmask_b32 v11, v11, v4, vcc")
    a("v_lshrrev_b32 v3, 4, v1\nv_lshl_add_u32 v11, v3, 5, v11\nv_and_b32 v3, 1, v1\nv_lshl_add_u32 v11, v3, 4, v11")


def q_ring_setup(a, ring):
    a(f"s_lshl_b32 s21, s3, 2\ns_add_u32 s21, s21, s6\ns_mul_i32 s21, s21, 73728\ns_add_u32 s21, s21, {OFF_WQKVP}")
    srd(a, 8, "s4", "s5", "s21", 73728)
    ring.prefill()


uid = [0]


def cluster_signal(a, sync, last_store):
    uid[0] += 1
    u = uid[0]
    a(f"s_add_u32 s20, s52, {sync*4096}")
    a("v_mov_b32 v3, 1")
    a.wait(vm=last_store)
    a("s_mov_b64 exec, 1")
    a(f"s_cmp_eq_u32 s45, 1\ns_cbranch_scc1 L_sigf{u}")
    a("buffer_wbl2 sc1\ns_waitcnt vmcnt(0)")
    a("buffer_store_dword v3, off, s[56:59], s20 sc1")
    a(f"s_branch L_sigd{u}")
    a(f"L_sigf{u}:")
    a("buffer_store_dword v3, off, s[56:59], s20")
    a(f"L_sigd{u}:")
    a("s_mov_b64 exec, -1")


def cluster_wait(a, off):
    uid[0] += 1
    u = uid[0]
    a("v_and_b32 v3, 31, v1\nv_lshlrev_b32 v3, 2, v3")
    a(f"s_mov_b32 s21, {SPIN_MAX}")
    a(f"L_cw{u}:")
    a(f"buffer_load_dword v4, v3, s[56:59], {off} offen sc1")
    a("s_waitcnt vmcnt(0)")
    a("v_cmp_ne_u32 vcc, 0, v4")
    a("s_sub_u32 s21, s21, 1\ns_nop 0")
    a(f"s_cmp_eq_u32 vcc_lo, -1\ns_cbranch_scc1 L_cwd{u}")
    a(f"s_cmp_lg_u32 s21, 0\ns_cbranch_scc1 L_cw{u}")
    a(f"L_cwd{u}:")
    a(f"s_cmp_eq_u32 s45, 1\ns_cbranch_scc1 L_cwf{u}")
    a("buffer_inv sc1\ns_waitcnt vmcnt(0)")
    a(f"L_cwf{u}:")
    a.vm_done = a.vm


def stats_plan(a, base, wr):
    ST, DSQ, DSUM, ONES, T = base, base + 16, base + 20, base + 24, base + 28
    tk = {}

    def sread(k):
        r = ST + (k % 4) * 4
        tk[k] = a.ds(f"ds_read_b128 v[{r}:{r+3}], v{253+(k&1)} offset:{(k&~1)*1024}")

    def smfma(k):
        r = ST + (k % 4) * 4
        c1 = "0" if k == 0 else f"v[{DSQ}:{DSQ+3}]"
        c2 = "0" if k == 0 else f"v[{DSUM}:{DSUM+3}]"
        a(f"v_mfma_f32_16x16x32_bf16 v[{DSQ}:{DSQ+3}], v[{r}:{r+3}], v[{r}:{r+3}], {c1}")
        a(f"v_mfma_f32_16x16x32_bf16 v[{DSUM}:{DSUM+3}], v[{ONES}:{ONES+3}], v[{r}:{r+3}], {c2}")

    def init():
        a("v_add_u32 v251, 36864, v249\nv_add_u32 v252, 36864, v250")
        a("s_mul_i32 s20, s6, 18432\nv_add_u32 v253, s20, v249\nv_add_u32 v254, s20, v250")
        for j in range(4):
            a(f"v_mov_b32 v{ONES+j}, 0x3f803f80")
        a("s_mov_b32 s36, 0x22222222\ns_mov_b32 s37, 0x22222222\ns_mov_b32 s38, 0x44444444\ns_mov_b32 s39, 0x44444444")
        a("s_mov_b32 s40, 0x88888888\ns_mov_b32 s41, 0x88888888\ns_mov_b32 s42, 0x00f0000f\ns_mov_b32 s43, 0xf0000f00")

    fin = [f"v_cndmask_b32 v{DSQ}, v{DSQ}, v{DSQ+1}, s[36:37]",
           f"v_mul_f32 v{DSUM}, {INV576}, v{DSUM}",
           f"v_cndmask_b32 v{DSQ}, v{DSQ}, v{DSQ+2}, s[38:39]",
           f"v_mul_f32 v{DSUM}, v{DSUM}, v{DSUM}",
           f"v_cndmask_b32 v{DSQ}, v{DSQ}, v{DSQ+3}, s[40:41]",
           f"v_mul_f32 v{DSQ}, {INV576}, v{DSQ}",
           f"v_sub_f32 v{DSQ}, v{DSQ}, v{DSUM}",
           f"v_max_f32 v{DSQ}, 0, v{DSQ}",
           f"v_add_f32 v{DSQ}, {EPS_LN}, v{DSQ}",
           f"v_rsq_f32 v{DSUM}, v{DSQ}"]
    return dict(sread=sread, smfma=smfma, init=init, tk=tk, fin=fin, RS=DSUM, VAR=DSQ, T=T)


def pass0(a, ring, W, accreg, swap, sp, publish, readback, late_fill):
    br = {}

    def bread(ks, mt):
        base = 249 + (ks & 1) + 2 * (mt >> 1)
        br[(ks, mt)] = a.ds(f"ds_read_b128 {breg(ks,mt)}, v{base} offset:{((mt%2)*18+(ks&~1))*1024}")
    for mt in range(4):
        bread(0, mt)
    sp["sread"](0)
    sp["sread"](1)
    for mt in range(4):
        bread(1, mt)
    for ks in range(18):
        lg = br[(ks, 3)]
        if ks < 9:
            lg = max(lg, sp["tk"][2 * ks + 1])
        a.wait(vm=ring.t[ks * W + W - 1], lg=lg)
        pre = []
        if ks < 8:
            pre += [lambda: sp["sread"](2 * ks + 2), lambda: sp["sread"](2 * ks + 3)]
        if ks + 2 < 18:
            pre += [lambda mt=mt: bread(ks + 2, mt) for mt in range(4)]
        fill = []
        if ks == 10:
            fill = list(sp["fin"])
        if ks == 11:
            publish()
        if ks == 13:
            a.wait_lg0()
            a("s_barrier")
            readback()
        if ks >= 15:
            k = (len(late_fill) + (17 - ks)) // (18 - ks)
            fill = late_fill[:k]
            del late_fill[:k]
            if ks == 15:
                a.wait(lg=readback.last)
        i = 0
        for t in range(W):
            for mt in range(4):
                d = accreg(t, mt)
                c = "0" if ks == 0 else f"v[{d}:{d+3}]"
                x, w = breg(ks, mt), ring.reg(ks * W + t)
                if swap:
                    a(f"v_mfma_f32_16x16x32_bf16 v[{d}:{d+3}], {x}, {w}, {c}")
                else:
                    a(f"v_mfma_f32_16x16x32_bf16 v[{d}:{d+3}], {w}, {x}, {c}")
                i += 1
                if pre:
                    pre.pop(0)()
                nf = (len(fill) + (4 * W - i)) // (4 * W + 1 - i)
                for _ in range(nf):
                    a(fill.pop(0))
            if ks < 9 and t < 2:
                sp["smfma"](2 * ks + t)
            ring.load(ks * W + t + NS)
        assert not pre and not fill


def phi_pairs(a, pairs, one, masked=None):
    for (s, m, d, t, e) in pairs:
        a(f"v_pk_mul_f32 v[{t}:{t+1}], v[{s}:{s+1}], {m}")
    for (s, m, d, t, e) in pairs:
        a(f"v_exp_f32_e64 v{e}, v{t} clamp\nv_exp_f32_e64 v{e+1}, v{t+1} clamp")
    for (s, m, d, t, e) in pairs:
        a(f"v_pk_fma_f32 v[{t}:{t+1}], v[{t}:{t+1}], s[22:23], {one}")
    if masked:
        a(f"s_mov_b64 exec, {masked}")
    for (s, m, d, t, e) in pairs:
        a(f"v_max_f32 v{t}, v{t}, v{e}\nv_max_f32 v{t+1}, v{t+1}, v{e+1}")
    for (s, m, d, t, e) in pairs:
        a(f"v_pk_add_f32 v[{t}:{t+1}], v[{t}:{t+1}], s[24:25]")
    if masked:
        a("s_mov_b64 exec, -1")
    for (s, m, d, t, e) in pairs:
        a(f"v_cvt_pk_bf16_f32 v{d}, v{t}, v{t+1}")


def phase_q(a, ring):
    ACC = 44
    KA, VA, RA, QA = ACC, ACC + 16, ACC + 32, ACC + 48
    C2, RS2, C1 = 140, 228, 244
    sp = stats_plan(a, 108, None)
    sp["init"]()
    a("v_and_b32 v5, 15, v1\nv_lshrrev_b32 v6, 4, v1")
    a(f"s_lshl_b32 s20, s6, 6\ns_add_u32 s20, s20, {STAT}")
    a("v_lshl_add_u32 v7, v5, 2, s20")
    a(f"v_lshlrev_b32 v8, 2, v5\nv_add_u32 v8, {STAT}, v8")
    a(f"v_lshlrev_b32 v9, 4, v6\nv_add_u32 v9, {STAT}, v9")
    a(f"s_lshl_b32 s22, s7, 16\ns_add_u32 s22, s22, {L_PQM}")
    srd(a, 16, "s48", "s49", "s22", 65536)
    a(f"s_lshl_b32 s22, s7, 3\ns_add_u32 s22, s22, s3\ns_lshl_b32 s22, s22, 10\ns_add_u32 s22, s22, {L_QREM}")
    srd(a, 28, "s48", "s49", "s22", 1024)
    a(f"s_mul_i32 s22, s3, 6144\ns_mul_i32 s23, s44, 49152\ns_add_u32 s22, s22, s23\ns_add_u32 s22, s22, {OFF_Z+Z_KV}")
    srd(a, 32, "s4", "s5", "s22", 6144)

    def publish():
        a(f"v_mul_f32 v{sp['T']}, {LOG2E}, v{sp['RS']}")
        a("s_mov_b64 exec, s[42:43]")
        a.ds(f"ds_write_b32 v7, v{sp['RS']}")
        a.ds(f"ds_write_b32 v7, v{sp['T']} offset:256")
        a("s_mov_b64 exec, -1")

    def readback():
        for mt in range(4):
            a.ds(f"ds_read_b128 v[{C2+4*mt}:{C2+4*mt+3}], v9 offset:{256+64*mt}")
        for mt in range(4):
            a.ds(f"ds_read_b128 v[{RS2+4*mt}:{RS2+4*mt+3}], v9 offset:{64*mt}")
        for mt in range(4):
            readback.last = a.ds(f"ds_read_b32 v{C1+mt}, v8 offset:{256+64*mt}")
    SEL, OA, OB, OQ, OR_, ONEL = 124, 130, 131, 132, 133, 134
    late = []
    late += ["v_lshlrev_b32 v10, 2, v6", "v_sub_u32 v10, v5, v10"]
    late += [f"v_mov_b32 v{SEL+j}, 0" for j in range(6)]
    late += ["v_mov_b32 v136, 0x3f80", "v_mov_b32 v137, 0x3f800000"]
    for d in range(4):
        late += [f"v_cmp_eq_u32 vcc, {d}, v10", f"v_lshlrev_b32 v{OA}, 2, v1" if d == 0 else "s_nop 0", "s_nop 0",
                 f"v_cndmask_b32 v{SEL+2+(d>>1)}, v{SEL+2+(d>>1)}, v{136+(d&1)}, vcc"]
    late += [f"v_and_b32 v{OB}, 3, v5", f"v_lshl_add_u32 v{OB}, v6, 2, v{OB}", f"v_lshlrev_b32 v{OB}, 2, v{OB}"]
    pstamp(a, 0)
    a("s_cmp_eq_u32 s44, 0\ns_cbranch_scc1 L_q_xok")
    a("s_waitcnt vmcnt(0)\ns_barrier")
    a("L_q_xok:")
    pstamp(a, 1)
    pass0(a, ring, 3, lambda t, mt: ACC + t * 16 + mt * 4, True, sp, publish, readback, late)
    pstamp(a, 2)
    a("s_add_u32 s27, s6, 1\ns_and_b32 s27, s27, 3")
    a("s_lshl_b32 s20, s27, 4\ns_mov_b64 s[36:37], 0xffff\ns_lshl_b64 s[36:37], s[36:37], s20")
    a("s_mov_b32 s38, 0x000f000f\ns_mov_b32 s39, 0x000f000f\ns_lshl_b32 s20, s6, 2\ns_lshl_b64 s[38:39], s[38:39], s20")
    a("s_mov_b32 s40, 0x00030003\ns_mov_b32 s41, 0x00030003\ns_lshl_b64 s[40:41], s[40:41], s20\ns_not_b64 s[40:41], s[40:41]")
    a("s_and_b64 s[42:43], s[36:37], s[38:39]")
    a(f"s_mov_b32 s22, {LN2}\ns_mov_b32 s23, {LN2}\ns_mov_b32 s24, {EPS_6}\ns_mov_b32 s25, {EPS_6}")
    a(f"v_cndmask_b32 v{ONEL}, 0, 1.0, s[40:41]")
    T1, T2 = 108, 116
    for h in range(2):
        phi_pairs(a, [(KA + 8 * h + 2 * i, f"v[{C2+8*h+2*i}:{C2+8*h+2*i+1}]", KA + 4 * h + i, T1 + 2 * i, T2 + 2 * i) for i in range(4)],
                  "1.0 op_sel_hi:[1,1,0]")
    for i in range(8):
        a(f"v_pk_mul_f32 v[{VA+2*i}:{VA+2*i+1}], v[{VA+2*i}:{VA+2*i+1}], v[{RS2+2*i}:{RS2+2*i+1}]")
    for i in range(8):
        a(f"v_cvt_pk_bf16_f32 v{VA+i}, v{VA+2*i}, v{VA+2*i+1}")
    MM, MR, RM, RR = 52, 56, 68, 72
    a(f"v_mfma_f32_16x16x32_bf16 v[{MM}:{MM+3}], v[{KA}:{KA+3}], v[{VA}:{VA+3}], 0")
    a(f"v_mfma_f32_16x16x32_bf16 v[{MM}:{MM+3}], v[{KA+4}:{KA+7}], v[{VA+4}:{VA+7}], v[{MM}:{MM+3}]")
    for h in range(2):
        phi_pairs(a, [(RA + 8 * h + 2 * i, f"v[{C2+8*h+2*i}:{C2+8*h+2*i+1}]", RA + 4 * h + i, T1 + 2 * i, T2 + 2 * i) for i in range(4)],
                  f"v[{ONEL}:{ONEL+1}] op_sel_hi:[1,1,0]", masked="s[40:41]")
        if h == 0:
            a("s_lshl_b32 s20, s6, 10")
            for r in range(4):
                a.vmem(f"buffer_atomic_add_f32 v{MM+r}, v{OA}, s[32:35], s20 offen offset:{r*256}")
    for s in range(2):
        for (d, x, y) in ((MR, KA, RA), (RM, RA, VA), (RR, RA, RA)):
            c = "0" if s == 0 else f"v[{d}:{d+3}]"
            a(f"v_mfma_f32_16x16x32_bf16 v[{d}:{d+3}], v[{x+4*s}:{x+4*s+3}], v[{y+4*s}:{y+4*s+3}], {c}")
    DT = 108
    for mt in range(4):
        sel = SEL + 2 if mt % 2 == 0 else SEL
        x = RA + 4 * (mt >> 1)
        a(f"v_mfma_f32_16x16x32_bf16 v[{DT+4*mt}:{DT+4*mt+3}], v[{x}:{x+3}], v[{sel}:{sel+3}], 0")
    a("s_lshl_b32 s20, s6, 6\ns_add_u32 s20, s20, 4096\ns_mov_b32 s21, 4096")
    a("s_mov_b64 exec, s[38:39]")
    for r in range(4):
        a.vmem(f"buffer_atomic_add_f32 v{MR+r}, v{OB}, s[32:35], s20 offen offset:{r*256}")
    a("s_mov_b64 exec, s[42:43]")
    for r in range(2):
        a.vmem(f"buffer_atomic_add_f32 v{RR+r}, v{OA}, s[32:35], s21 offen offset:{1536+r*256}")
    a("s_mov_b64 exec, s[36:37]")
    for r in range(2):
        atom = a.vmem(f"buffer_atomic_add_f32 v{RM+r}, v{OA}, s[32:35], s21 offen offset:{1024+r*256}")
    a(f"v_add_u32 v{OR_}, {HB+8192}, v{OA}")
    for mt in range(4):
        a(f"v_cvt_pk_bf16_f32 v{DT+4*mt}, v{DT+4*mt+2}, v{DT+4*mt+3}")
        a.ds(f"ds_write_b32 v{OR_}, v{DT+4*mt} offset:{mt*256}")
    a("s_mov_b64 exec, -1")
    pstamp(a, 3)
    a.wait(vm=ring.t[71])
    for ks in range(18):
        for mt in range(4):
            d = QA + 4 * mt
            c = "0" if ks == 0 else f"v[{d}:{d+3}]"
            a(f"v_mfma_f32_16x16x32_bf16 v[{d}:{d+3}], {ring.reg(54 + ks)}, {breg(ks, mt)}, {c}")
    a("s_lshr_b32 s20, s6, 1\ns_lshl_b32 s20, s20, 10")
    a(f"s_and_b32 s21, s6, 1\ns_lshl_b32 s21, s21, 3\ns_add_u32 s20, s20, s21\ns_add_u32 s20, s20, {HB}")
    a(f"v_add_u32 v{OQ}, s20, v2")
    last = None
    T1, T2 = 140, 148
    for h in range(2):
        prs = []
        for i in range(4):
            mt = 2 * h + (i >> 1)
            c = C1 + (mt & ~1)
            sel = "op_sel_hi:[1,0]" if mt % 2 == 0 else "op_sel:[0,1]"
            prs.append((QA + 8 * h + 2 * i, f"v[{c}:{c+1}] {sel}", QA + 4 * h + i, T1 + 2 * i, T2 + 2 * i))
        phi_pairs(a, prs, "1.0 op_sel_hi:[1,1,0]")
        for mt in (2 * h, 2 * h + 1):
            a.ds(f"ds_write_b64 v{OQ}, v[{QA+2*mt}:{QA+2*mt+1}] offset:{mt*2048}")
    a(f"s_lshl_b32 s20, s6, 11\ns_add_u32 s20, s20, {HB}\nv_add_u32 v{OQ}, s20, v2")
    a(f"s_lshl_b32 s21, s6, 8\ns_add_u32 s20, s21, {HB+8192}\nv_add_u32 v{OR_}, s20, v2")
    a(f"s_lshl_b32 s20, s44, 13\ns_add_u32 s20, s20, {Z_GF}\ns_and_b32 s22, s2, 63\ns_lshl_b32 s22, s22, 7\ns_add_u32 s20, s20, s22")
    a("s_lshr_b32 s22, s2, 6\ns_lshl_b32 s22, s22, 2\ns_add_u32 s22, s22, s20")
    a("v_mov_b32 v3, 1")
    a.wait(vm=atom, lg=a.lg)
    a("s_barrier")
    pstamp(a, 4)
    a("s_cmp_lg_u32 s6, 0\ns_cbranch_scc1 L_q_noarr")
    a("s_mov_b64 exec, 1")
    a("buffer_store_dword v3, off, s[56:59], s22 sc1")
    a("s_mov_b64 exec, -1")
    a("L_q_noarr:")
    t0 = a.ds(f"ds_read_b128 v[{QA}:{QA+3}], v{OQ}")
    t1 = a.ds(f"ds_read_b128 v[{QA+4}:{QA+7}], v{OQ} offset:1024")
    t2 = a.ds(f"ds_read_b128 v[{QA+8}:{QA+11}], v{OR_}")
    a("s_lshl_b32 s20, s6, 14\ns_lshl_b32 s22, s3, 11\ns_add_u32 s20, s20, s22")
    a.wait(lg=t0)
    a.vmem(f"buffer_store_dwordx4 v[{QA}:{QA+3}], v2, s[16:19], s20 offen sc1")
    a.wait(lg=t1)
    a.vmem(f"buffer_store_dwordx4 v[{QA+4}:{QA+7}], v2, s[16:19], s20 offen offset:1024 sc1")
    a.wait(lg=t2)
    a("s_mov_b64 exec, 0xffff")
    last = a.vmem(f"buffer_store_dwordx4 v[{QA+8}:{QA+11}], v2, s[28:31], s21 offen sc1")
    a("s_mov_b64 exec, -1")
    return last


O_EARLY = 8


def o_prefetch(a, part):
    if part == 0:
        a(f"s_mul_i32 s24, s54, {162*1024}\ns_add_u32 s24, s24, {OFF_WOP}")
        srd(a, 28, "s4", "s5", "s24", 162 * 1024)
        a("s_mul_i32 s27, s6, 36864")
    for i in (range(O_EARLY) if part == 0 else range(O_EARLY, 36)):
        if i % 4 == 0 and i:
            a("s_add_u32 s27, s27, 4096")
        a.vmem(f"buffer_load_dwordx4 a[{4*i}:{4*i+3}], v2, s[28:31], s27 offen offset:{(i%4)*1024} sc1")
    if part == 0:
        a(f"s_mul_i32 s21, s53, 36864\ns_add_u32 s22, s21, {OFF_XA}")
        srd(a, 32, "s4", "s5", "s22", 36864)
        a("s_mul_i32 s40, s54, 9\ns_add_u32 s40, s40, 1\ns_lshr_b32 s40, s40, 1\ns_add_u32 s40, s40, s6\ns_lshl_b32 s40, s40, 10")
        a("s_add_u32 s41, s40, 18432")
        a("s_lshr_b32 s42, s54, 1\ns_mul_i32 s42, s42, 9\ns_add_u32 s42, s42, 4\ns_lshl_b32 s42, s42, 10")
        a("s_and_b32 s43, s54, 1\ns_lshl_b32 s43, s43, 3\ns_add_u32 s42, s42, s43\ns_add_u32 s43, s42, 18432")


def grid_barrier(a, last_store):
    a(f"s_add_u32 s20, s52, {3*4096}")
    a.wait(vm=last_store)
    a("s_mov_b64 exec, 1")
    a.vmem("buffer_store_dword v3, off, s[56:59], s20 sc1")
    a("s_mov_b64 exec, -1")
    o_prefetch(a, 1)
    a("s_cmp_lg_u32 s6, 0\ns_cbranch_scc1 L_gb_noh")
    a(f"s_mov_b32 s21, {144*1024}")
    for i in range(18):
        if i % 4 == 0 and i:
            a("s_add_u32 s21, s21, 4096")
        a(f"buffer_load_dwordx4 a[{144+4*i}:{144+4*i+3}], v2, s[28:31], s21 offen offset:{(i%4)*1024} sc1")
    a("L_gb_noh:")
    a("s_cmp_lg_u32 s6, 3\ns_cbranch_scc1 L_gb_done")
    a(f"s_lshl_b32 s20, s44, 13\ns_add_u32 s20, s20, {Z_GF}\ns_add_u32 s22, s51, {3*4096}")
    a("v_and_b32 v8, 31, v1\nv_lshlrev_b32 v8, 2, v8\nv_lshlrev_b32 v9, 7, v1")
    a(f"s_mov_b32 s21, {SPIN_MAX}")
    a("L_gb_spin:")
    a("buffer_load_dwordx4 v[4:7], v9, s[56:59], s20 offen sc1")
    a("buffer_load_dword v3, v8, s[56:59], s22 offen sc1")
    a("s_waitcnt vmcnt(0)")
    a("v_and_b32 v4, v4, v5\nv_and_b32 v6, v6, v7\nv_and_b32 v4, v4, v3\nv_and_b32 v4, v4, v6")
    a("v_cmp_ne_u32 vcc, 0, v4")
    a("s_sub_u32 s21, s21, 1\ns_nop 0")
    a("s_cmp_eq_u64 vcc, exec\ns_cbranch_scc1 L_gb_done")
    a("s_cmp_lg_u32 s21, 0\ns_cbranch_scc1 L_gb_spin")
    a("L_gb_done:")
    a("s_barrier")


def phase_o_setup(a):
    a(f"s_mul_i32 s21, s6, 12288\ns_mul_i32 s22, s44, 49152\ns_add_u32 s21, s21, s22\ns_add_u32 s21, s21, {OFF_Z+Z_KV}")
    srd(a, 8, "s4", "s5", "s21", 12288)
    a(f"s_lshl_b32 s22, s53, 15\ns_add_u32 s22, s22, {L_PQM}")
    srd(a, 12, "s48", "s49", "s22", 32768)
    a(f"s_lshl_b32 s23, s7, 13\ns_add_u32 s23, s23, {L_QREM}")
    srd(a, 16, "s48", "s49", "s23", 8192)
    a("v_lshlrev_b32 v252, 2, v1")
    a("v_and_b32 v253, 3, v1\nv_lshrrev_b32 v254, 4, v1\nv_lshl_add_u32 v253, v254, 2, v253")
    a("v_and_b32 v254, 12, v1\nv_lshl_add_u32 v253, v254, 2, v253\nv_lshlrev_b32 v253, 2, v253")


def phase_o(a, ring):
    KVR, BR, A12, D1, D2 = 8, 56, 108, 172, 236
    kvt = {}
    a(f"s_and_b32 s20, s2, 7\ns_lshl_b32 s20, s20, 7\ns_add_u32 s20, s20, {Z_XM}")
    xm = a.vmem("buffer_load_dword v3, off, s[56:59], s20 sc1")
    for G in range(2):
        b = KVR + 24 * G
        a(f"s_mov_b32 s20, {6144*G+4096}")
        for r in range(4):
            a.vmem(f"buffer_load_dword v{b+16+r}, v253, s[8:11], s20 offen offset:{r*256} sc1")
        for r in range(4):
            a.vmem(f"buffer_load_dword v{b+20+r}, v252, s[8:11], s20 offen offset:{1024+r*256} sc1")
        a(f"s_mov_b32 s20, {6144*G}")
        for i in range(16):
            kvt[G] = a.vmem(f"buffer_load_dword v{b+i}, v252, s[8:11], s20 offen offset:{i*256} sc1")
    a("s_lshl_b32 s20, s6, 11\ns_and_b32 s21, s53, 1\ns_lshl_b32 s21, s21, 9\ns_add_u32 s20, s20, s21")
    for mt in range(2):
        b = BR + 26 * mt
        for G in range(2):
            a.vmem(f"buffer_load_dword v{b+G}, v252, s[16:19], s20 offen offset:{G*1024+mt*256} sc1")
    for mt in range(2):
        a(f"s_lshl_b32 s20, s6, 12\ns_add_u32 s20, s20, {mt*16384}")
        for q in range(4):
            b = BR + 26 * mt + 6 * q + 2
            pqt = a.vmem(f"buffer_load_dwordx4 v[{b}:{b+3}], v2, s[12:15], s20 offen offset:{q*1024} sc1")
    for mt in range(2):
        a.vmem(f"buffer_load_dwordx4 a[{216+4*mt}:{216+4*mt+3}], v2, s[32:35], s{40+mt} offen sc1")
    for mt in range(2):
        rest = a.vmem(f"buffer_load_dwordx2 a[{224+2*mt}:{224+2*mt+1}], v2, s[32:35], s{42+mt} offen sc1")
    M1, M0 = 12, 20

    def aslots(hh):
        G = hh >> 2
        if hh & 1 == 0:
            return 2, G, 1 - G
        return 0, 2 + G, 3 - G
    for hh in range(8):
        mb, ru, rz = aslots(hh)
        a(f"v_mov_b32 v{A12+8*hh+rz}, 0\nv_mov_b32 v{A12+8*hh+4+rz}, 0")
    a(f"s_lshl_b32 s20, s6, 13\ns_add_u32 s20, s20, {HB}\nv_add_u32 v6, s20, v2")
    a(f"s_lshr_b32 s20, s6, 1\ns_lshl_b32 s20, s20, 11\ns_and_b32 s25, s6, 1\ns_lshl_b32 s25, s25, 3\ns_add_u32 s20, s20, s25\ns_add_u32 s20, s20, {HB+32768}")
    a(f"v_add_u32 v7, s20, v2\nv_add_u32 v5, {HB}, v2")
    for j in range(4):
        m1 = 0x000f000f << (4 * j)
        a(f"s_mov_b32 s{M1+2*j}, {m1}\ns_mov_b32 s{M1+1+2*j}, {m1}")
        m0 = 0xffff << (16 * ((j + 1) & 3))
        a(f"s_mov_b32 s{M0+2*j}, {m0 & 0xffffffff}\ns_mov_b32 s{M0+1+2*j}, {m0 >> 32}")
    for G in range(2):
        b = KVR + 24 * G
        a.wait(vm=kvt[G])
        if G == 0:
            pstamp(a, 6)
            a("v_readfirstlane_b32 s45, v3")
        a(f"v_cvt_pk_bf16_f32 v{b+16}, v{b+16}, v{b+17}")
        a(f"v_cvt_pk_bf16_f32 v{b+17}, v{b+18}, v{b+19}")
        a(f"v_cvt_pk_bf16_f32 v{b+20}, v{b+20}, v{b+21}")
        a(f"v_cvt_pk_bf16_f32 v{b+22}, v{b+22}, v{b+23}")
        if G == 0:
            a("s_bcnt1_i32_b32 s45, s45")
            if FORCE_SLOW:
                a("s_mov_b32 s45, 2")
        for j in range(4):
            hh = 4 * G + j
            mb, ru, rz = aslots(hh)
            a1, a2 = A12 + 8 * hh, A12 + 8 * hh + 4
            a(f"v_cvt_pk_bf16_f32 v{a1+mb}, v{b+4*j}, v{b+4*j+1}")
            a(f"v_cvt_pk_bf16_f32 v{a1+mb+1}, v{b+4*j+2}, v{b+4*j+3}")
            a(f"v_cndmask_b32 v{a1+ru}, 0, v{b+20}, s[{M0+2*j}:{M0+1+2*j}]")
            a(f"v_cndmask_b32 v{a2+mb}, 0, v{b+16}, s[{M1+2*j}:{M1+1+2*j}]")
            a(f"v_cndmask_b32 v{a2+mb+1}, 0, v{b+17}, s[{M1+2*j}:{M1+1+2*j}]")
            a(f"v_cndmask_b32 v{a2+ru}, 0, v{b+22}, s[{M1+2*j}:{M1+1+2*j}]")
    a.wait(vm=pqt)
    for mt in range(2):
        b = BR + 26 * mt
        for q in range(1, 5):
            a(f"v_mov_b64 v[{b+6*q}:{b+6*q+1}], v[{b}:{b+1}]")

    def bop(hh, mt):
        q = hh >> 1
        b = BR + 26 * mt + 6 * q + (0 if hh & 1 == 0 else 4)
        return f"v[{b}:{b+3}]"
    for hh in range(8):
        for mt in range(2):
            d = D2 + 8 * (hh >> 2) + 4 * mt
            c = "0" if hh & 3 == 0 else f"v[{d}:{d+3}]"
            a2 = A12 + 8 * hh + 4
            a(f"v_mfma_f32_16x16x32_bf16 v[{d}:{d+3}], v[{a2}:{a2+3}], {bop(hh,mt)}, {c}")
    RC, ORM = 8, 24
    post = []
    for G in range(2):
        for mt in range(2):
            d, rc = D2 + 8 * G + 4 * mt, RC + 8 * G + 4 * mt
            post += [f"v_add_f32 v{rc}, {EPS_6}, v{d+3}"]
    for i in range(4):
        post += [f"v_rcp_f32 v{RC+4*i}, v{RC+4*i}"]
    for G in range(2):
        for mt in range(2):
            d, rc = D2 + 8 * G + 4 * mt, RC + 8 * G + 4 * mt
            post += [f"v_mov_b32 v{rc+1}, v{rc}", f"v_mul_f32 v{d}, v{d}, v{rc}", f"v_mul_f32 v{d+1}, v{d+1}, v{rc}"]
    for i in range(4):
        post += [f"v_permlane16_swap_b32 v{RC+4*i}, v{RC+4*i+1}"]
    n = 0
    for hh in range(8):
        for mt in range(2):
            d = D1 + 8 * hh + 4 * mt
            a1 = A12 + 8 * hh
            a(f"v_mfma_f32_16x16x32_bf16 v[{d}:{d+3}], v[{a1}:{a1+3}], {bop(hh,mt)}, 0")
            n += 1
            if n >= 5:
                for _ in range(2):
                    a(post.pop(0))
    assert not post
    for i in range(4):
        rc = RC + 4 * i
        a(f"v_mov_b64 v[{rc+2}:{rc+3}], v[{rc}:{rc+1}]")
    for G in range(2):
        for mt in range(2):
            d = D2 + 8 * G + 4 * mt
            a(f"v_cvt_pk_bf16_f32 v{ORM+2*mt+G}, v{d}, v{d+1}")
    for i in range(4):
        rc = RC + 4 * i
        a(f"v_permlane32_swap_b32 v{rc}, v{rc+2}")
        a(f"v_permlane32_swap_b32 v{rc+1}, v{rc+3}")
    for mt in range(2):
        a.ds(f"ds_write_b64 v7, v[{ORM+2*mt}:{ORM+2*mt+1}] offset:{mt*1024}")
    OF = 28
    n = 0
    for q in range(4):
        for mt in range(2):
            o = OF + 4 * (n % 4)
            n += 1
            for s in range(2):
                hh = 2 * q + s
                d = D1 + 8 * hh + 4 * mt
                rc = RC + 8 * (hh >> 2) + 4 * mt + (hh & 2)
                sel = "op_sel_hi:[1,0]" if s == 0 else "op_sel:[0,1]"
                a(f"v_pk_mul_f32 v[{d}:{d+1}], v[{d}:{d+1}], v[{rc}:{rc+1}] {sel}")
                a(f"v_pk_mul_f32 v[{d+2}:{d+3}], v[{d+2}:{d+3}], v[{rc}:{rc+1}] {sel}")
            for s in range(2):
                d = D1 + 8 * (2 * q + s) + 4 * mt
                a(f"v_cvt_pk_bf16_f32 v{o+2*s}, v{d}, v{d+1}")
                a(f"v_cvt_pk_bf16_f32 v{o+2*s+1}, v{d+2}, v{d+3}")
            a.ds(f"ds_write_b128 v6, v[{o}:{o+3}] offset:{(2*q+mt)*1024}")
    a.wait_lg0()
    a("s_barrier")
    pstamp(a, 7)
    def oreg(i):
        r = 8 + 4 * i
        return f"v[{r}:{r+3}]"
    ACC = 228
    ot = {}
    for i in range(12):
        ot[i] = a.ds(f"ds_read_b128 {oreg(i)}, v5 offset:{i*1024}")
    a(f"s_lshl_b32 s21, s3, 2\ns_add_u32 s21, s21, s6\ns_mul_i32 s21, s21, {324*1024}")
    srd(a, 8, "s4", "s5", "s21", 324 * 1024)
    a("s_mov_b32 s26, 0")
    nxt = 12
    for ks in range(18):
        a.wait(lg=ot[2 * ks + 1])
        for hf in range(2):
            for mt in range(2):
                d = ACC + 8 * hf + 4 * mt
                w = 4 * (2 * ks + hf)
                c = "0" if ks == 0 else f"v[{d}:{d+3}]"
                a(f"v_mfma_f32_16x16x32_bf16 v[{d}:{d+3}], a[{w}:{w+3}], {oreg(2*ks+mt)}, {c}")
                if nxt < 36 and mt == 0:
                    ot[nxt] = a.ds(f"ds_read_b128 {oreg(nxt)}, v5 offset:{nxt*1024}")
                    nxt += 1
        ring.load(ks)
    a.wait(vm=rest)
    a("s_cmp_lg_u32 s6, 0\ns_cbranch_scc1 L_o_noh")
    for ks in range(18):
        for mt in range(2):
            d = ACC + 16 + 4 * mt
            w = 144 + 4 * ks
            c = "0" if ks == 0 else f"v[{d}:{d+3}]"
            a(f"v_mfma_f32_16x16x32_bf16 v[{d}:{d+3}], a[{w}:{w+3}], {oreg(2*ks+mt)}, {c}")
    for mt in range(2):
        d = ACC + 16 + 4 * mt
        for j in range(2):
            a(f"v_accvgpr_read_b32 v{8+j}, a{224+2*mt+j}")
        for j in range(2):
            a(f"v_lshlrev_b32 v{10+2*j}, 16, v{8+j}\nv_and_b32 v{11+2*j}, 0xffff0000, v{8+j}")
        for r in range(4):
            a(f"v_add_f32 v{d+r}, v{d+r}, v{10+r}")
        a(f"v_cvt_pk_bf16_f32 v{d}, v{d}, v{d+1}\nv_cvt_pk_bf16_f32 v{d+1}, v{d+2}, v{d+3}")
        a(f"buffer_store_dwordx2 v[{d}:{d+1}], v2, s[32:35], s{42+mt} offen")
    a("L_o_noh:")
    last = None
    for mt in range(2):
        t = 16 + 16 * mt
        for j in range(4):
            a(f"v_accvgpr_read_b32 v{t+j}, a{216+4*mt+j}")
        for j in range(4):
            a(f"v_lshlrev_b32 v{t+4+2*j}, 16, v{t+j}\nv_and_b32 v{t+5+2*j}, 0xffff0000, v{t+j}")
        for hf in range(2):
            d = ACC + 8 * hf + 4 * mt
            for r in (0, 2):
                a(f"v_pk_add_f32 v[{t+4+4*hf+r}:{t+5+4*hf+r}], v[{d+r}:{d+r+1}], v[{t+4+4*hf+r}:{t+5+4*hf+r}]")
        for j in range(4):
            a(f"v_cvt_pk_bf16_f32 v{t+j}, v{t+4+2*j}, v{t+5+2*j}")
        last = a.vmem(f"buffer_store_dwordx4 v[{t}:{t+3}], v2, s[32:35], s{40+mt} offen")
    return last


def phase_f(a, ring):
    a(f"s_mul_i32 s21, s7, 73728\ns_add_u32 s22, s21, {OFF_XA}")
    srd(a, 12, "s4", "s5", "s22", 73728)
    xt = dma_x_tile(a, 12)
    SETS = (44, 108)
    TMP = 228
    VH0, VH1, VWA, VWB, VWC, VST = 5, 6, 7, 8, 9, 10
    VPA, VPB, VPC, VXW, VXR = TMP + 16, TMP + 17, TMP + 18, TMP + 19, TMP + 20
    sp = stats_plan(a, SETS[1], None)
    sp["init"]()
    a(f"v_add_u32 v{VH0}, {HB}, v2\nv_add_u32 v{VH1}, {HB+36864}, v2")
    a(f"s_lshl_b32 s20, s6, 13\nv_add_u32 v{VWA}, s20, v{VH0}")
    a(f"s_lshl_b32 s20, s6, 12\nv_add_u32 v{VWB}, s20, v{VH0}")
    a("s_lshr_b32 s24, s6, 1\ns_and_b32 s25, s6, 1")
    a(f"s_lshl_b32 s20, s24, 12\ns_lshl_b32 s22, s25, 3\ns_add_u32 s20, s20, s22\nv_add_u32 v{VXW}, s20, v2")
    a(f"v_add_u32 v{VWC}, {HB+49152}, v{VXW}")
    a(f"s_lshl_b32 s20, s6, 11\nv_add_u32 v{VPA}, s20, v2")
    a(f"s_lshl_b32 s20, s6, 10\nv_add_u32 v{VPB}, s20, v2")
    a(f"s_add_u32 s20, s24, 4\ns_lshl_b32 s20, s20, 10\ns_mul_i32 s22, s25, 36864\ns_add_u32 s20, s20, s22\nv_add_u32 v{VPC}, s20, v2")
    a(f"s_mul_i32 s22, s3, {XF_BYTES}\ns_add_u32 s22, s22, s21\ns_add_u32 s22, s22, {OFF_PART}")
    srd(a, 16, "s4", "s5", "s22", 73728)
    a(f"v_and_b32 v{VST}, 15, v1\nv_lshlrev_b32 v{VST}, 3, v{VST}\nv_add_u32 v{VST}, {STAT}, v{VST}")
    CS = TMP
    ST1 = TMP + 8
    T = sp["T"]

    def publish():
        a(f"v_mul_f32 v{T+1}, v{sp['VAR']}, v{sp['RS']}")
        a(f"v_mul_f32 v{T}, {NLOG2E}, v{sp['RS']}")
        a(f"s_lshl_b32 s20, s6, 7\nv_add_u32 v{T+2}, s20, v{VST}")
        a("s_mov_b64 exec, s[42:43]")
        a.ds(f"ds_write_b64 v{T+2}, v[{T}:{T+1}]")
        a("s_mov_b64 exec, -1")

    def readback():
        for mt in range(4):
            readback.last = a.ds(f"ds_read_b64 v[{CS+2*mt}:{CS+2*mt+1}], v{VST} offset:{128*mt}")
    br = {}

    def hread(ks, mt):
        base = f"v{VH0}" if ks < 9 else f"v{VH1}"
        br[(ks, mt)] = a.ds(f"ds_read_b128 {breg(ks,mt)}, {base} offset:{((ks%9)*4+mt)*1024}")

    def acc(ps, t, mt):
        return SETS[ps % 2] + (t * 4 + mt) * 4

    def silu_fill(ps):
        out = []
        n = 0
        for t in range(FW[ps]):
            for mt in range(4):
                d = acc(ps, t, mt)
                pk = acc(ps, t & ~1, mt) + 2 * (t & 1)
                tm = ST1 + 4 * (n % 2)
                n += 1
                c1, sd = CS + 2 * mt, CS + 2 * mt + 1
                out += [f"v_mul_f32 v{tm+r}, v{d+r}, v{c1}" for r in range(4)]
                out += [f"v_exp_f32 v{tm+r}, v{tm+r}" for r in range(4)]
                out += [f"v_fma_f32 v{tm+r}, v{tm+r}, v{sd}, v{sd}" for r in range(4)]
                out += [f"v_rcp_f32 v{tm+r}, v{tm+r}" for r in range(4)]
                out += [f"v_mul_f32 v{tm+r}, v{d+r}, v{tm+r}" for r in range(4)]
                out += [f"v_cvt_pk_bf16_f32 v{pk}, v{tm}, v{tm+1}", f"v_cvt_pk_bf16_f32 v{pk+1}, v{tm+2}, v{tm+3}"]
                if t & 1:
                    v, off = ((VWA, (t >> 1) * 4096), (VWB, 32768), (VWB, 57344))[ps]
                    out.append(("ds", f"ds_write_b128 v{v}, v[{pk-2}:{pk+1}] offset:{off+mt*1024}"))
                elif t == FW[ps] - 1:
                    out.append(("ds", f"ds_write_b64 v{VWC}, v[{pk}:{pk+1}] offset:{mt*1024}"))
        return out

    def store_fill(ps):
        out = []
        order = [2, 0, 1] if ps == 3 else range(FW[ps])
        for t in order:
            for mt in range(4):
                d = acc(ps, t, mt)
                pk = acc(ps, t & ~1, mt) + 2 * (t & 1)
                out += [f"v_cvt_pk_bf16_f32 v{pk}, v{d}, v{d+1}", f"v_cvt_pk_bf16_f32 v{pk+1}, v{d+2}, v{d+3}"]
                if t & 1:
                    v, off = {3: (VPB, 0), 4: (VPA, 6144 + (t >> 1) * 1024), 5: (VPB, 14336)}[ps]
                    out.append(f"s_mov_b32 s20, {mt*18432+off}")
                    out.append(("vm", f"buffer_store_dwordx4 v[{pk-2}:{pk+1}], v{v}, s[16:19], s20 offen {PSC}"))
                elif t == FW[ps] - 1:
                    out.append(("ds", f"ds_write_b64 v{VXW}, v[{pk}:{pk+1}] offset:{mt*1024}"))
        return out

    def emit(f):
        if isinstance(f, tuple):
            return (a.ds if f[0] == "ds" else a.vmem)(f[1])
        a(f)

    def cost(f):
        if isinstance(f, tuple):
            return 1
        return 2 if f.startswith(("v_exp", "v_rcp")) else 1

    a.wait(vm=xt)
    a("s_barrier")
    pstamp(a, 10)
    pass0(a, ring, FW[0], lambda t, mt: acc(0, t, mt), False, sp, publish, readback, [])
    xr = {}
    for ps in range(1, 6):
        W = FW[ps]
        fill = silu_fill(ps - 1) if ps <= 3 else store_fill(ps - 1)
        fsteps = {1: 18, 2: 18, 3: 12, 4: 8, 5: 12}[ps]
        total = sum(cost(f) for f in fill)
        spent = 0
        for ks in range(18):
            i0 = FBASE[ps] + ks * W
            a.wait(vm=ring.t[i0 + W - 1], lg=br[(ks, 3)] if ps == 3 else None)
            pre = []
            if (ps, ks) in ((2, 1), (3, 5), (3, 12), (4, 9)):
                if (ps, ks) in ((3, 12), (4, 9)):
                    assert not fill
                a.wait_lg0()
                a("s_barrier")
            if ps == 2 and 2 <= ks < 18:
                pre += [lambda j=j: hread(j >> 2, j & 3) for j in range(2 * (ks - 2), 2 * (ks - 2) + 2)]
            elif ps == 3 and 6 <= ks < 16:
                pre += [lambda mt=mt: hread(ks + 2, mt) for mt in range(4)]
            elif ps == 4 and ks == 9:
                def xrd(i):
                    r = acc(3, 2, i)
                    xr[i] = a.ds(f"ds_read_b128 v[{r}:{r+3}], v{VPA} offset:{i*1024}")
                pre += [lambda i=i: xrd(i) for i in range(2)]
            elif ps == 4 and ks in (11, 12):
                def xst(i):
                    r = acc(3, 2, i)
                    a.wait(lg=xr[i])
                    a(f"s_mov_b32 s20, {i*18432}")
                    a.vmem(f"buffer_store_dwordx4 v[{r}:{r+3}], v{VPC}, s[16:19], s20 offen {PSC}")
                pre += [lambda: xst(ks - 11)]
            i = 0
            for t in range(W):
                for mt in range(4):
                    d = acc(ps, t, mt)
                    c = "0" if ks == 0 else f"v[{d}:{d+3}]"
                    a(f"v_mfma_f32_16x16x32_bf16 v[{d}:{d+3}], {ring.reg(i0+t)}, {breg(ks,mt)}, {c}")
                    i += 1
                    if pre:
                        pre.pop(0)()
                    if not (ks == 0 and i < 3):
                        target = total * (ks * 4 * W + i + 1) / (fsteps * 4 * W)
                        while fill and spent < target:
                            f = fill.pop(0)
                            spent += cost(f)
                            emit(f)
                ring.load(i0 + t + NS)
            assert not pre
        assert not fill, (ps, len(fill))
        if ps == 2:
            pstamp(a, 11)
    last = None
    for f in store_fill(5):
        r = emit(f)
        last = r or last
    return last


def phase_r_setup(a):
    a(f"s_mul_i32 s21, s7, 73728\ns_add_u32 s22, s21, {OFF_XA}")
    srd(a, 12, "s4", "s5", "s22", 73728)
    a(f"s_add_u32 s22, s21, {OFF_PART}")
    srd(a, 16, "s4", "s5", "s22", 7 * XF_BYTES + 73728)
    a(f"s_add_u32 s22, s4, {OFF_XA}\ns_addc_u32 s23, s5, 0")
    a("s_cmp_eq_u32 s44, 0\ns_cselect_b32 s22, s22, s46\ns_cselect_b32 s23, s23, s47\ns_cselect_b32 s27, 1024, 64\ns_cselect_b64 vcc, -1, 0")
    srd(a, 28, "s22", "s23", "s21", 73728)
    a("s_mul_i32 s20, s3, 9\ns_lshl_b32 s22, s6, 1\ns_add_u32 s22, s22, s20\ns_lshl_b32 s22, s22, 10\nv_add_u32 v5, s22, v2")
    a("s_add_u32 s22, s20, 8\ns_lshl_b32 s22, s22, 10\ns_lshl_b32 s23, s6, 8\ns_add_u32 s22, s22, s23\nv_lshl_add_u32 v6, v1, 2, s22")
    a("s_lshr_b32 s22, s3, 1\ns_mul_i32 s22, s22, 18432\ns_and_b32 s23, s3, 1\ns_mul_i32 s23, s23, 576\ns_add_u32 s22, s22, s23")
    a("v_and_b32 v7, 15, v1\nv_mul_u32_u24 v7, 1152, v7\nv_lshrrev_b32 v8, 4, v1\nv_lshl_add_u32 v7, v8, 4, v7")
    a("s_lshl_b32 s23, s6, 7\ns_add_u32 s23, s23, s22\nv_add_u32 v7, s23, v7")
    a("v_lshrrev_b32 v8, 2, v1\nv_mul_u32_u24 v8, 1152, v8\nv_and_b32 v9, 3, v1\nv_lshl_add_u32 v8, v9, 2, v8")
    a("s_lshl_b32 s23, s6, 4\ns_add_u32 s23, s23, s22\ns_add_u32 s23, s23, 512\nv_add_u32 v8, s23, v8")
    a("v_cndmask_b32 v7, v7, v5, vcc\nv_cndmask_b32 v8, v8, v6, vcc")


def phase_r(a):
    LD, S, T = 12, 104, 122
    tk = []
    for f in range(9):
        b = LD + 10 * f
        if f == 0:
            d, so = "s[12:15]", "0"
        else:
            d, so = "s[16:19]", "s20"
            a(f"s_mov_b32 s20, {(f-1)*XF_BYTES}")
        a.vmem(f"buffer_load_dwordx4 v[{b}:{b+3}], v5, {d}, {so} offen sc1")
        a.vmem(f"buffer_load_dwordx4 v[{b+4}:{b+7}], v5, {d}, {so} offen offset:1024 sc1")
        tk.append(a.vmem(f"buffer_load_dword v{b+8}, v6, {d}, {so} offen sc1"))
    for f in range(9):
        a.wait(vm=tk[f])
        b = LD + 10 * f
        o = S if f == 0 else T
        for j in range(9):
            a(f"v_lshlrev_b32 v{o+2*j}, 16, v{b+j}\nv_and_b32 v{o+2*j+1}, 0xffff0000, v{b+j}")
        if f:
            for j in range(9):
                a(f"v_pk_add_f32 v[{S+2*j}:{S+2*j+1}], v[{S+2*j}:{S+2*j+1}], v[{T+2*j}:{T+2*j+1}]")
    for j in range(9):
        a(f"v_cvt_pk_bf16_f32 v{S+j}, v{S+2*j}, v{S+2*j+1}")
    a.vmem(f"buffer_store_dwordx4 v[{S}:{S+3}], v7, s[28:31], 0 offen")
    a.vmem(f"buffer_store_dwordx4 v[{S+4}:{S+7}], v7, s[28:31], s27 offen")
    return a.vmem(f"buffer_store_dword v{S+8}, v8, s[28:31], 0 offen")


def x_gather(a):
    a("v_lshrrev_b32 v126, 3, v1\nv_and_b32 v127, 7, v1\nv_xor_b32 v127, v127, v126\nv_mul_u32_u24 v126, 1152, v126\nv_lshl_add_u32 v126, v127, 4, v126")
    a("v_add_u32 v127, 9216, v126")
    a("s_mul_i32 s20, s6, 18432\ns_mov_b32 s21, s20")
    for i in range(18):
        a("s_mov_b32 m0, s20\ns_add_u32 s20, s20, 1024")
        a(f"buffer_load_dwordx4 v{126+(i&1)}, s[48:51], s21 offen lds")
        if i & 1:
            a("s_add_u32 s21, s21, 128")


def first_touch(a):
    uid[0] += 1
    u = uid[0]
    srd(a, 8, "s26", "s27", 0, 576 * 1728 * 2)
    a("s_mul_i32 s20, s7, 73728")
    srd(a, 48, "s24", "s25", "s20", 73728)
    a(f"s_cmp_ge_u32 s6, 2\ns_cbranch_scc1 L_ftx{u}")
    a("s_lshl_b32 s20, s6, 6\nv_add_u32 v126, s20, v1\nv_min_u32 v126, 89, v126")
    a("v_mul_u32_u24 v127, 205, v126\nv_lshrrev_b32 v127, 10, v127")
    a("v_mul_u32_u24 v125, 5, v127\nv_sub_u32 v126, v126, v125\nv_lshlrev_b32 v126, 7, v126\nv_min_u32 v126, 428, v126")
    a("v_mul_u32_u24 v127, 3456, v127\nv_add_u32 v126, v126, v127")
    a(f"s_and_b32 s20, s2, 7\ns_mul_i32 s20, s20, 432\ns_lshr_b32 s21, s2, 3\ns_mul_i32 s21, s21, {18*3456}\ns_add_u32 s20, s20, s21")
    a("buffer_load_dword v125, v126, s[8:11], s20 offen")
    a(f"s_branch L_ftd{u}")
    a(f"L_ftx{u}:")
    a("v_min_u32 v126, 35, v1\nv_lshlrev_b32 v126, 7, v126")
    a("s_lshl_b32 s20, s3, 1\ns_add_u32 s20, s20, s6\ns_sub_u32 s20, s20, 2\ns_mul_i32 s20, s20, 4608")
    a("buffer_load_dword v125, v126, s[48:51], s20 offen")
    a(f"L_ftd{u}:")


def phase_k(a):
    a("s_load_dwordx4 s[24:27], s[0:1], 0")
    a("s_load_dwordx2 s[28:29], s[0:1], 16")
    a("s_load_dwordx4 s[32:35], s[0:1], 32")
    a("s_cmp_ge_u32 s2, 177\ns_cbranch_scc1 L_k0_misc")
    a("s_getpc_b64 s[20:21]\nL_k0_pc:")
    a("s_add_u32 s20, s20, L_k0_tab-L_k0_pc\ns_addc_u32 s21, s21, 0")
    a("s_lshl_b32 s22, s2, 2\ns_add_u32 s22, s22, s6\ns_lshl_b32 s22, s22, 4")
    a("s_load_dwordx4 s[16:19], s[20:21], s22")
    a("v_lshrrev_b32 v3, 4, v1")
    a("v_bfe_u32 v4, v1, 2, 2")
    a("v_and_b32 v5, 3, v1")
    LV = 16
    a("s_cmp_lt_u32 s2, 24\ns_cbranch_scc1 L_k0_qkv")
    a("v_lshrrev_b32 v6, 3, v1\nv_and_b32 v7, 7, v1\nv_and_b32 v8, 2, v6")
    a("s_cmp_lt_u32 s2, 96\ns_cselect_b32 s22, 0, 1\ns_cselect_b32 s23, 64, 0")
    a("v_lshlrev_b32 v8, s22, v8\nv_xor_b32 v7, v7, v8\nv_lshlrev_b32 v7, 4, v7")
    a(f"s_mul_i32 s36, s6, 18432\ns_add_u32 s36, s36, {HB}")
    a("s_waitcnt lgkmcnt(0)")
    stamp(a, 0)
    first_touch(a)
    if FTWAIT:
        a("s_waitcnt vmcnt(0)")
    a("s_cmp_lt_u32 s2, 96\ns_cselect_b32 s20, s32, s34\ns_cselect_b32 s21, s33, s35")
    a(f"s_cmp_lt_u32 s2, 168\ns_cselect_b32 s20, s20, s28\ns_cselect_b32 s21, s21, s29\ns_mov_b32 s37, {576*4608*2}\ns_cselect_b32 s10, s37, {576*576*2}")
    a("s_mov_b32 s8, s20\ns_and_b32 s9, s21, 0xffff\ns_mov_b32 s11, 0x20000")
    a("v_mul_lo_u32 v6, v6, s19\nv_add_u32 v6, v6, v7\nv_xor_b32 v7, s23, v6")
    a("s_mul_i32 s37, s6, 144\ns_mul_i32 s37, s37, s19\ns_add_u32 s37, s37, s18\ns_lshl_b32 s38, s19, 3")
    for i in range(18):
        a("s_mov_b32 m0, s36\ns_add_u32 s36, s36, 1024")
        a(f"buffer_load_dwordx4 v{6+(i&1)}, s[8:11], s37 offen {K0_NT} lds")
        a("s_add_u32 s37, s37, s38")
    x_gather(a)
    srd(a, 12, "s4", "s5", "s16", 18 * 4096)
    a("s_cmp_ge_u32 s2, 96\ns_cbranch_scc1 L_k0_bc")

    def trread(addr):
        tk = []
        for ks in range(18):
            for half in range(2):
                v, off = addr(ks, half)
                r = LV + 4 * ks + 2 * half
                t = a.ds(f"ds_read_b64_tr_b16 v[{r}:{r+1}], v{v} offset:{off}")
            tk.append(t)
        return tk

    def split(off, lim, v0, v1):
        return (v0, off) if off < lim else (v1, off - lim)

    def colsum(tk, regs, d):
        for j in range(4):
            a(f"v_mov_b32 v{12+j}, 0x3f803f80")
        for n, r in enumerate(regs):
            a.wait(lg=tk[n])
            c = "0" if n == 0 else f"v[{d}:{d+3}]"
            a(f"v_mfma_f32_16x16x32_bf16 v[{d}:{d+3}], v[12:15], v[{r}:{r+3}], {c}")

    def centre(r, m, t):
        for j in range(4):
            a(f"v_lshlrev_b32 v{t+2*j}, 16, v{r+j}\nv_and_b32 v{t+2*j+1}, 0xffff0000, v{r+j}")
        for j in range(4):
            a(f"v_pk_add_f32 v[{t+2*j}:{t+2*j+1}], v[{t+2*j}:{t+2*j+1}], v[{m}:{m+1}] op_sel_hi:[1,0]")
        for j in range(4):
            a(f"v_cvt_pk_bf16_f32 v{r+j}, v{t+2*j}, v{t+2*j+1}")

    def store_all(tk, centred):
        a("s_mov_b32 s20, 0")
        for ks in range(18):
            r = LV + 4 * ks
            if centred:
                centre(r, 88, 92 + 8 * (ks & 1))
            else:
                a.wait(lg=tk[ks])
            a(f"buffer_store_dwordx4 v[{r}:{r+3}], v2, s[12:15], s20 offen {K0_SC}")
            a("s_add_u32 s20, s20, s17")
    NEG576 = INV576 | 0x80000000
    a("v_lshl_add_u32 v8, v3, 3, v4\nv_lshlrev_b32 v8, 7, v8")
    a("v_lshrrev_b32 v9, 1, v5\ns_lshl_b32 s20, s6, 1\nv_add_u32 v9, s20, v9")
    a("v_and_b32 v10, 2, v4\nv_xor_b32 v9, v9, v10\nv_and_b32 v10, 1, v3\nv_lshlrev_b32 v10, 2, v10\nv_xor_b32 v9, v9, v10")
    a("v_lshl_add_u32 v8, v9, 4, v8\nv_and_b32 v10, 1, v5\nv_lshl_add_u32 v8, v10, 3, v8")
    a(f"v_add_u32 v8, {HB}, v8\nv_add_u32 v9, 36864, v8")
    stamp(a, 1)
    a("s_waitcnt vmcnt(18)\ns_barrier")
    stamp(a, 2)
    tk = trread(lambda ks, half: split((32 * ks + 4 * half) * 128, 36864, 8, 9))
    a("L_k0_ctail:")
    colsum(tk, [LV + 4 * ks for ks in range(18)], 88)
    a(f"v_mul_f32 v88, {NEG576}, v88")
    store_all(tk, True)
    a("s_branch L_k0_done")
    a("L_k0_bc:")
    a.lg = a.lg_done = 0
    a("s_lshr_b32 s20, s6, 1\ns_lshl_b32 s20, s20, 2\nv_add_u32 v11, s20, v5")
    a(f"s_and_b32 s21, s6, 1\ns_lshl_b32 s21, s21, 3\ns_add_u32 s21, s21, {HB}")
    a("v_lshl_add_u32 v8, v3, 2, v4\nv_lshlrev_b32 v8, 7, v8")
    a("v_and_b32 v10, 2, v4\nv_lshlrev_b32 v10, 1, v10\nv_xor_b32 v9, v11, v10")
    a("v_lshl_add_u32 v8, v9, 4, v8\nv_add_u32 v8, s21, v8\nv_add_u32 v9, 36864, v8")
    a("s_cmp_ge_u32 s2, 168\ns_cbranch_scc1 L_k0_wo")
    stamp(a, 1)
    a("s_waitcnt vmcnt(18)\ns_barrier")
    stamp(a, 2)
    tk = trread(lambda ks, half: split(w2_frow(ks, half) * 128, 36864, 8, 9))
    a("L_k0_ptail:")
    store_all(tk, False)
    a("s_branch L_k0_done")
    a("L_k0_wo:")
    a.lg = a.lg_done = 0
    a("v_lshrrev_b32 v10, 1, v4\nv_mul_u32_u24 v10, 72, v10\nv_mul_u32_u24 v12, 18, v3\nv_add_u32 v10, v10, v12")
    a("v_and_b32 v12, 1, v3\nv_xor_b32 v12, 1, v12\nv_lshl_add_u32 v10, v12, 4, v10\nv_and_b32 v12, 1, v4\nv_add_u32 v10, v10, v12")
    a("v_and_b32 v12, 2, v10\nv_lshlrev_b32 v12, 1, v12\nv_xor_b32 v12, v11, v12")
    a("v_lshlrev_b32 v10, 7, v10\nv_lshl_add_u32 v10, v12, 4, v10\nv_add_u32 v10, s21, v10")
    stamp(a, 1)
    a("s_waitcnt vmcnt(18)\ns_barrier")
    stamp(a, 2)
    trread(lambda ks, half: split((36 * ks + 20 * half) * 128, 36864, 8, 9) if ks < 16 else (10, (288 * (ks - 16) + 144 * half) * 128))
    a("s_branch L_k0_ptail")
    a("L_k0_qkv:")
    a.lg = a.lg_done = 0
    a("s_mov_b32 s22, 7282")
    for j in range(3):
        if j < 2:
            a(f"s_add_u32 s20, s6, {4*j}\ns_lshl_b32 s20, s20, 6\nv_add_u32 v9, s20, v1")
        else:
            a("v_add_u32 v9, 512, v1")
        a(f"v_mul_lo_u32 v10, v9, s22\nv_lshrrev_b32 v10, 16, v10\nv_mul_u32_u24 v11, 9, v10\nv_sub_u32 v9, v9, v11")
        a(f"v_mul_u32_u24 v10, 3456, v10\nv_lshl_add_u32 v{6+j}, v9, 4, v10")
    a("s_waitcnt lgkmcnt(0)")
    stamp(a, 0)
    first_touch(a)
    a(f"s_lshl_b32 s36, s6, 10\ns_add_u32 s36, s36, {HB}\ns_mov_b32 s37, s18")
    for blk in range(9):
        for j in range(2):
            a(f"s_add_u32 m0, s36, {blk*9216+j*4096}\ns_nop 0")
            a(f"buffer_load_dwordx4 v{6+j}, s[8:11], s37 offen lds")
        a(f"s_add_u32 s37, s37, {64*3456}")
    a(f"s_mul_i32 s36, s6, 9216\ns_add_u32 s36, s36, {HB}\ns_mul_i32 s37, s6, {64*3456}\ns_add_u32 s37, s37, s18")
    for j in range(3):
        if j == 2:
            a("s_cmp_lg_u32 s6, 0\ns_cbranch_scc1 L_k0_q1")
        a(f"s_add_u32 m0, s36, {j*4*9216+8192}\ns_nop 0")
        a("buffer_load_dwordx4 v8, s[8:11], s37 offen lds")
        a(f"s_add_u32 s37, s37, {4*64*3456}")
    a("L_k0_q1:")
    x_gather(a)
    srd(a, 12, "s4", "s5", "s16", 18 * 4096)
    srd(a, 40, "s4", "s5", "s19", 2304)
    a("v_lshl_add_u32 v10, v3, 3, v4\nv_mul_u32_u24 v10, 144, v10")
    a("s_mul_i32 s20, s6, 36\ns_and_b32 s21, s6, 1\ns_lshl_b32 s22, s21, 2\ns_add_u32 s20, s20, s22")
    a(f"s_add_u32 s20, s20, {HB}")
    a("v_lshl_add_u32 v8, v5, 3, v10\nv_add_u32 v8, s20, v8\nv_add_u32 v9, 41472, v8")
    a(f"s_lshr_b32 s20, s6, 1\ns_mul_i32 s20, s20, 72\ns_add_u32 s20, s20, {HB+32}\nv_mul_u32_u24 v11, {32*144}, v5")
    a("v_add3_u32 v10, v10, v11, s20")
    a(f"v_and_b32 v11, 1, v5\nv_mul_u32_u24 v11, {32*144}, v11\nv_lshl_add_u32 v7, v3, 3, v4\nv_mul_u32_u24 v7, 144, v7\nv_add3_u32 v11, v7, v11, s20")
    a(f"v_add_u32 v11, {4*128*144}, v11")
    a("v_and_b32 v6, 1, v5\nv_lshl_add_u32 v6, v3, 1, v6\nv_lshlrev_b32 v6, 4, v6\nv_lshl_add_u32 v6, v4, 7, v6")
    a("s_lshl_b32 s21, s21, 1\ns_mov_b32 s44, 0x33333333\ns_lshl_b32 s44, s44, s21\ns_mov_b32 s45, s44")
    a("s_mov_b32 s46, 0x00ff00ff\ns_mov_b32 s47, 0x00ff00ff")
    stamp(a, 1)
    a("s_waitcnt vmcnt(18)\ns_barrier")
    stamp(a, 2)
    RV = 128
    rt = []
    for q in range(5):
        for half in range(2):
            r = RV + 4 * q + 2 * half
            v, off = (10, (q * 128 + 4 * half) * 144) if q < 4 else (11, 4 * half * 144)
            t = a.ds(f"ds_read_b64_tr_b16 v[{r}:{r+1}], v{v} offset:{off}")
        rt.append(t)
    a.wait(lg=rt[4])
    for j in range(4):
        a(f"v_cndmask_b32 v{RV+16+j}, 0, v{RV+16+j}, s[46:47]")
    colsum(rt, [RV + 4 * q for q in range(5)], 88)
    a.lg = a.lg_done = 0
    trread(lambda ks, half: split((32 * ks + 4 * half) * 144, 41472, 8, 9))
    a("v_add_f32_dpp v88, v88, v88 row_ror:4 row_mask:0xf bank_mask:0xf")
    a("v_add_f32_dpp v88, v88, v88 row_ror:8 row_mask:0xf bank_mask:0xf")
    a(f"v_mul_f32 v88, {NEG576}, v88")
    for q in range(5):
        centre(RV + 4 * q, 88, 92 + 8 * (q & 1))
    a("s_mov_b64 exec, s[44:45]")
    for q in range(5):
        a(f"buffer_store_dwordx4 v[{RV+4*q}:{RV+4*q+3}], v6, s[40:43], 0 offen offset:{q*512} sc1")
    a("s_mov_b64 exec, -1")
    a("s_branch L_k0_ctail")
    a("L_k0_misc:")
    a("s_waitcnt lgkmcnt(0)")
    stamp(a, 0)
    first_touch(a)
    a("s_cmp_ge_u32 s2, 182\ns_cbranch_scc1 L_k0_m2")
    a(f"s_sub_u32 s20, s2, 177\ns_lshl_b32 s20, s20, 15\ns_add_u32 s20, s20, {OFF_Z}")
    srd(a, 12, "s4", "s5", "s20", 32768)
    a("v_lshlrev_b32 v5, 4, v0")
    for j in range(4):
        a(f"v_mov_b32 v{8+j}, 0")
    for j in range(8):
        a(f"s_mov_b32 s20, {4096*j}")
        a(f"buffer_store_dwordx4 v[8:11], v5, s[12:15], s20 offen sc1")
    srd(a, 12, "s30", "s31", 0, 256)
    a("s_waitcnt vmcnt(0)\ns_barrier")
    a("s_cmp_lg_u32 s6, 0\ns_cbranch_scc1 L_k0_m2")
    a("s_sub_u32 s20, s2, 177\ns_lshl_b32 s20, s20, 2\nv_mov_b32 v3, 1\ns_mov_b64 exec, 1")
    a("buffer_store_dword v3, off, s[12:15], s20 sc1")
    a("s_mov_b64 exec, -1")
    a("L_k0_m2:")
    if HELP:
        a("s_cmp_lt_u32 s2, 184\ns_cbranch_scc1 L_k0_m3")
        srd(a, 12, "s32", "s33", 0, 576 * 4608 * 2)
        a(f"s_sub_u32 s20, s2, 184\ns_lshl_b32 s20, s20, 7\ns_mul_i32 s21, s6, {144*9216}\ns_add_u32 s20, s20, s21\ns_add_u32 s20, s20, {80*9216}")
        a("v_mul_u32_u24 v3, 9216, v1")
        a("buffer_load_dword v4, v3, s[12:15], s20 offen")
        a("L_k0_m3:")
    x_gather(a)
    a("L_k0_done:")
    stamp(a, 3)
    srd(a, 8, "s30", "s31", 0, 256)
    srd(a, 56, "s4", "s5", OFF_Z, Z_BYTES)
    a("s_cmp_lg_u32 s6, 3\ns_cbranch_scc1 L_k0_zsd")
    a("v_min_u32 v3, 4, v1\nv_lshlrev_b32 v3, 2, v3")
    a(f"s_mov_b32 s21, {SPIN_MAX}")
    a("L_k0_zs:")
    a("buffer_load_dword v4, v3, s[8:11], 0 offen sc1")
    a("s_waitcnt vmcnt(0)")
    a("v_cmp_ne_u32 vcc, 0, v4")
    a("s_sub_u32 s21, s21, 1\ns_nop 0")
    a("s_cmp_eq_u64 vcc, exec\ns_cbranch_scc1 L_k0_zsd")
    a("s_sleep 8")
    a("s_cmp_lg_u32 s21, 0\ns_cbranch_scc1 L_k0_zs")
    a("L_k0_zsd:")
    a("s_waitcnt vmcnt(0)\ns_barrier")
    a("s_sub_u32 s20, s2, 144\ns_cmp_lt_u32 s2, 24\ns_cselect_b32 s20, s2, s20\ns_cselect_b32 s21, 0, 24")
    a("s_cmp_lt_u32 s20, s21\ns_cbranch_scc1 L_k0_nosig\ns_cmp_ge_u32 s20, 33\ns_cbranch_scc1 L_k0_nosig\ns_cmp_lg_u32 s6, 0\ns_cbranch_scc1 L_k0_nosig")
    a(f"s_lshl_b32 s20, s20, 7\ns_add_u32 s20, s20, {Z_B0}\nv_mov_b32 v3, 1\ns_mov_b64 exec, 1")
    a("buffer_store_dword v3, off, s[56:59], s20 sc1")
    a("s_mov_b64 exec, -1")
    a("L_k0_nosig:")
    a("v_and_b32 v3, 15, v1\nv_lshrrev_b32 v4, 4, v1\nv_and_b32 v5, 7, v1\nv_xor_b32 v4, v4, v5\nv_lshlrev_b32 v4, 4, v4")
    a("v_lshl_add_u32 v249, v3, 7, v4\nv_xor_b32 v250, 64, v249")
    a(f"s_mul_i32 s20, s7, 73728\ns_add_u32 s20, s20, {OFF_XA}")
    srd(a, 12, "s4", "s5", "s20", 73728)
    a("s_mul_i32 s20, s3, 9\ns_add_u32 s20, s20, s6\ns_and_b32 s21, s20, 1\ns_cmp_eq_u32 s21, 0\ns_cselect_b64 vcc, -1, 0")
    a("s_sub_u32 s21, s20, s21\ns_lshl_b32 s21, s21, 10\ns_lshl_b32 s20, s20, 10")
    a("v_cndmask_b32 v5, v250, v249, vcc\nv_add_u32 v5, s21, v5")
    a("ds_read_b128 v[12:15], v5\nds_read_b128 v[16:19], v5 offset:4096\nds_read_b128 v[20:23], v5 offset:8192")
    a("s_add_u32 s21, s20, 4096\ns_add_u32 s22, s20, 8192\ns_cmp_eq_u32 s6, 0\ns_cselect_b32 s22, s22, 0x40000000")
    a("s_waitcnt lgkmcnt(0)")
    a("buffer_store_dwordx4 v[12:15], v2, s[12:15], s20 offen sc1")
    a("buffer_store_dwordx4 v[16:19], v2, s[12:15], s21 offen sc1")
    a("buffer_store_dwordx4 v[20:23], v2, s[12:15], s22 offen sc1")
    q_lane_setup(a)
    a("s_cmp_lg_u32 s6, 3\ns_cbranch_scc1 L_k0_god")
    a(f"v_min_u32 v3, 32, v1\nv_lshlrev_b32 v3, 7, v3\ns_mov_b32 s20, {Z_B0}")
    a(f"s_mov_b32 s21, {SPIN_MAX}")
    a("L_k0_go:")
    a("buffer_load_dword v4, v3, s[56:59], s20 offen sc1")
    a("s_waitcnt vmcnt(0)")
    a("v_cmp_ne_u32 vcc, 0, v4")
    a("s_sub_u32 s21, s21, 1\ns_nop 0")
    a("s_cmp_eq_u64 vcc, exec\ns_cbranch_scc1 L_k0_god")
    a("s_sleep 4")
    a("s_cmp_lg_u32 s21, 0\ns_cbranch_scc1 L_k0_go")
    a("L_k0_god:")
    a("s_barrier")
    a.lg = a.lg_done = 0
    stamp(a, 4)


def save_stamps(a):
    if not STAMP:
        return
    a("s_waitcnt lgkmcnt(0)")
    a("s_lshl_b32 s20, s44, 4")
    for i in range(15):
        a(f"s_add_u32 m0, s20, {i}\ns_nop 0\nv_writelane_b32 v255, s{60+2*i}, m0")


def kp():
    a = Asm()
    name = NAME
    a(f".globl {name}\n.p2align 8\n.type {name},@function\n{name}:")
    a(f"s_cmp_ge_u32 s2, 256\ns_cbranch_scc1 L_{name}_end")
    if STAMP:
        a(f"{STAMPOP} s[92:93]\nv_mov_b32 v255, 0")
        for i in range(30):
            a(f"s_mov_b32 s{60+i}, 0")
    a("s_load_dwordx2 s[4:5], s[0:1], 64")
    a("s_load_dwordx2 s[30:31], s[0:1], 56")
    a("v_lshrrev_b32 v1, 6, v0")
    a("v_readfirstlane_b32 s6, v1")
    a("v_and_b32 v1, 63, v0")
    a("v_lshlrev_b32 v2, 4, v1")
    a("s_getpc_b64 s[20:21]\nL_pc0:")
    a("s_lshr_b32 s22, s2, 3\ns_lshl_b32 s22, s22, 2\ns_add_u32 s22, s22, s6\ns_lshl_b32 s22, s22, 7")
    a(f"v_and_b32 v3, 3, v1\nv_lshlrev_b32 v3, 14, v3\nv_add_u32 v3, s22, v3\nv_min_u32 v3, L_{NAME}_end-L_pc0, v3")
    a("global_load_dword v124, v3, s[20:21]")
    a("s_and_b32 s7, s2, 7\ns_lshl_b32 s7, s7, 2\ns_lshr_b32 s3, s2, 3\ns_and_b32 s20, s3, 3\ns_add_u32 s7, s7, s20\ns_lshr_b32 s3, s3, 2")
    phase_k(a)
    ring = QRing(a, 72)
    q_ring_setup(a, ring)
    if STAMP:
        a("s_waitcnt lgkmcnt(0)")
        for i in range(5):
            a(f"v_writelane_b32 v255, s{60+2*i}, {40+i}")
    a("s_load_dwordx2 s[46:47], s[0:1], 48")
    a("s_lshl_b32 s53, s7, 1\ns_and_b32 s20, s3, 1\ns_add_u32 s53, s53, s20\ns_lshr_b32 s54, s3, 1")
    a(f"s_lshl_b32 s51, s7, 7\ns_add_u32 s51, s51, {Z_CF}")
    a("s_lshl_b32 s52, s3, 2\ns_add_u32 s52, s52, s6\ns_lshl_b32 s52, s52, 2\ns_add_u32 s52, s52, s51")
    a("s_mov_b32 s44, 0\ns_mov_b32 s45, 0")
    a("s_getreg_b32 s20, hwreg(HW_REG_XCC_ID, 0, 4)\ns_lshl_b32 s20, 1, s20\nv_mov_b32 v3, s20")
    a(f"s_add_u32 s48, s4, {OFF_L}\ns_addc_u32 s49, s5, 0")
    a(f"s_and_b32 s20, s2, 7\ns_lshl_b32 s20, s20, 7\ns_add_u32 s20, s20, {Z_XM}")
    a("s_cmp_eq_u32 s6, 0\ns_cselect_b32 s20, s20, 0x40000000")
    a("s_mov_b64 exec, 1")
    a.vmem("buffer_atomic_or v3, off, s[56:59], s20")
    a("s_mov_b64 exec, -1")
    a("s_waitcnt lgkmcnt(0)")
    a("L_layer:")
    last = phase_q(a, ring)
    o_prefetch(a, 0)
    phase_o_setup(a)
    grid_barrier(a, last)
    pstamp(a, 5)
    ring = Ring(a, 324)
    last = phase_o(a, ring)
    pstamp(a, 8)
    cluster_signal(a, 0, last)
    cluster_wait(a, "s51")
    pstamp(a, 9)
    last = phase_f(a, ring)
    pstamp(a, 12)
    ring = QRing(a, 72)
    q_lane_setup(a)
    q_ring_setup(a, ring)
    phase_r_setup(a)
    cluster_signal(a, 1, last)
    a("s_add_u32 s22, s51, 4096")
    cluster_wait(a, "s22")
    pstamp(a, 13)
    last = phase_r(a)
    pstamp(a, 14)
    a(f"s_cmp_eq_u32 s44, 1\ns_cbranch_scc1 L_{name}_fin")
    cluster_signal(a, 2, last)
    save_stamps(a)
    a(f"s_mul_i32 s22, s7, 73728\ns_add_u32 s22, s22, {OFF_XA}")
    srd(a, 12, "s4", "s5", "s22", 73728)
    a("s_add_u32 s22, s51, 8192")
    cluster_wait(a, "s22")
    dma_x_tile(a, 12)
    a(f"s_mov_b32 s44, 1\ns_add_u32 s48, s48, {L_STRIDE}\ns_addc_u32 s49, s49, 0")
    a("s_add_u32 s51, s51, 16384\ns_add_u32 s52, s52, 16384")
    a("s_branch L_layer")
    a(f"L_{name}_fin:")
    if STAMP:
        save_stamps(a)
        a("s_waitcnt vmcnt(0)")
        a(f"{STAMPOP} s[94:95]\ns_waitcnt lgkmcnt(0)")
        a("v_writelane_b32 v255, s92, 32\nv_writelane_b32 v255, s94, 33\nv_writelane_b32 v255, s45, 34")
        a(f"s_lshl_b32 s20, s2, 2\ns_add_u32 s20, s20, s6\ns_lshl_b32 s20, s20, 8\ns_add_u32 s20, s20, {OFF_STAMP+0x400000}")
        a("s_add_u32 s20, s4, s20\ns_addc_u32 s21, s5, 0\nv_lshlrev_b32 v3, 2, v1")
        a("global_store_dword v3, v255, s[20:21]")
    a(f"L_{name}_end:\ns_endpgm")
    a(".p2align 4\n.type L_k0_tab,@object\nL_k0_tab:")
    for e in k0_table():
        a(".long " + ", ".join(str(x) for x in e))
    a(".size L_k0_tab, .-L_k0_tab")
    return name, a, dict(nv=512, acc=256, ns=102), (256, 256, STAT + 512)


HEADER = """; interleave_layers: 2 x (LN -> linear attention -> residual, LN -> SiLU FFN -> residual), S=2048 D=576 F=4608 H=32
"""


def build(delay=False):
    ks = {}
    for f in (kp,):
        name, a, kd, geo = f()
        ks[name] = (a, kd, geo)
    order = [NAME]
    s = HEADER
    if delay:
        s += "; @launch kernel=delay_kernel grid=(256,1,1) block=(64,1,1) lds=0\n"
    for n in order:
        g, b, l = ks[n][2]
        s += f"; @launch {'kernel=' + n + ' ' if LIST else ''}grid=({g},1,1) block=({b},1,1) lds={l}\n"
    s += '.amdgcn_target "amdgcn-amd-amdhsa--gfx950"\n.text\n'
    kd = '.section .rodata,"a"\n'
    if delay:
        s += ".globl delay_kernel\n.p2align 8\n.type delay_kernel,@function\ndelay_kernel:\ns_mov_b32 s4, 3000\nL_dl:\ns_sleep 4\ns_sub_u32 s4, s4, 1\ns_cmp_lg_u32 s4, 0\ns_cbranch_scc1 L_dl\ns_endpgm\n"
        kd += KD.format(name="delay_kernel", nv=8, acc=8, ns=16)
    for n, (a, d, geo) in ks.items():
        s += a.text()
        kd += KD.format(name=n, **d)
        sys.stderr.write(f"{n}: {len(a.lines)} lines, {a.nops} nops inserted\n")
    return s + kd


if __name__ == "__main__":
    out = sys.argv[1]
    opts = sys.argv[2:]
    if "stamp" in opts or "stampc" in opts:
        STAMP = True
    if "stampc" in opts:
        STAMPOP = "s_memtime"
    if "k0nont" in opts:
        K0_NT = ""
    if "k0plain" in opts:
        K0_SC = ""
    if "nohelp" in opts:
        HELP = False
    if "ftwait" in opts:
        FTWAIT = True
    if "slow" in opts:
        FORCE_SLOW = True
    LIST = STAMP or "list" in opts
    open(out, "w").write(build(delay=STAMP))
```

```python
import sys, os
sys.path.insert(0, os.path.dirname(os.path.abspath(__file__)))
from asm import *

OFF_WFP = 0x0
OFF_WQKVP = 0xA20000
OFF_WOP = 0xC60000
OFF_Z = 0xD10000
Z_BYTES = 0x28000
Z_KV = 0x0
Z_GF = 0x22000
Z_B0 = 0x26000
Z_XM = 0x18800
Z_CF = 0x19000
OFF_XA = 0xD40000
OFF_PART = 0x1000000
OFF_L = 0x2200000
L_STRIDE = 0x240000
L_PQM = 0x0
L_QREM = 0x200000
OFF_STAMP = 0x8000000
XF_BYTES = 0x240000
LOG2E = 0x3FB8AA3B
NLOG2E = 0xBFB8AA3B
INV576 = 0x3AE38E39
EPS_LN = 0x3727C5AC
EPS_6 = 0x358637BD

STAMP = False


def start(a, name, nwg):
    a(f".globl {name}\n.p2align 8\n.type {name},@function\n{name}:")
    a(f"s_cmp_ge_u32 s2, {nwg}\ns_cbranch_scc1 L_{name}_end")
    if STAMP:
        a("s_memrealtime s[92:93]\ns_memtime s[94:95]\ns_load_dwordx2 s[90:91], s[0:1], 56")
        for i in range(24):
            a(f"s_mov_b32 s{60+i}, 0")
    a("s_load_dwordx2 s[4:5], s[0:1], 64")
    a("v_lshrrev_b32 v1, 6, v0")
    a("v_readfirstlane_b32 s6, v1")
    a("v_and_b32 v1, 63, v0")
    a("v_lshlrev_b32 v2, 4, v1")


def stamp(a, i):
    if STAMP:
        a(f"{STAMPOP} s[{60+2*i}:{61+2*i}]")


def finish(a, name, nwaves):
    if STAMP:
        a("s_waitcnt vmcnt(0) lgkmcnt(0)")
        a("s_memrealtime s[96:97]\ns_memtime s[98:99]")
        a("s_lshr_b32 s90, s90, 9\ns_and_b32 s90, s90, 31\ns_lshl_b32 s90, s90, 19")
        a(f"s_mul_i32 s91, s2, {nwaves}\ns_add_u32 s91, s91, s6\ns_lshl_b32 s91, s91, 7")
        a(f"s_add_u32 s90, s90, s91\ns_add_u32 s90, s90, {OFF_STAMP}")
        a("s_add_u32 s90, s4, s90\ns_addc_u32 s91, s5, 0")
        a("s_waitcnt lgkmcnt(0)")
        a("s_mov_b64 exec, -1")
        for i in range(8):
            a(f"v_mov_b32 v{4+i}, s{92+i}")
        a("v_mov_b32 v3, 0")
        a("global_store_dwordx4 v3, v[4:7], s[90:91]")
        a("global_store_dwordx4 v3, v[8:11], s[90:91] offset:16")
        for q in range(6):
            for i in range(4):
                a(f"v_mov_b32 v{12+4*q+i}, s{60+4*q+i}")
            a(f"global_store_dwordx4 v3, v[{12+4*q}:{15+4*q}], s[90:91] offset:{32+16*q}")
    a(f"L_{name}_end:\ns_endpgm")


def srd(a, d, lo, hi, off, size):
    a(f"s_add_u32 s{d}, {lo}, {off}")
    a(f"s_addc_u32 s{d+1}, {hi}, 0")
    a(f"s_and_b32 s{d+1}, s{d+1}, 0xffff")
    a(f"s_mov_b32 s{d+2}, {size}")
    a(f"s_mov_b32 s{d+3}, 0x20000")


def xg_sum(a, x, t):
    a(f"v_mov_b32 v{t}, v{x}")
    a(f"v_permlane32_swap_b32 v{x}, v{t}")
    a(f"v_add_f32 v{x}, v{x}, v{t}")
    a(f"v_mov_b32 v{t}, v{x}")
    a(f"v_permlane16_swap_b32 v{x}, v{t}")
    a(f"v_add_f32 v{x}, v{x}, v{t}")


FW = (4, 3, 2, 3, 4, 2)
FBASE = (0, 72, 126, 162, 216, 288)


def w2_frow(hk, half):
    if hk < 8:
        u, t = hk >> 1, 2 * (hk & 1) + half
    elif hk < 12:
        u, t = hk - 8, 4 + half
    elif hk < 14:
        u, t = 2 * (hk - 12) + half, 6
    else:
        u, t = hk - 14, 7 + half
    return 144 * u + 16 * t


def f1_slot(t9):
    ps = 0 if t9 < 4 else (1 if t9 < 7 else 2)
    return FBASE[ps] + t9 - (0, 4, 7)[ps], FW[ps]


def f2_slot(p, hf):
    if p < 4:
        return p, FBASE[3] + hf, 3
    if p < 6:
        return 2 * (p - 4) + hf, FBASE[3] + 2, 3
    if p < 14:
        return (p - 6) >> 1, FBASE[4] + 2 * ((p - 6) & 1) + hf, 4
    return p - 14, FBASE[5] + hf, 2


def wo_slot(p, hf):
    if p in (4, 13):
        return (2 * (p == 13) + hf) * 162 + 144, 1
    ns = 0 if p < 4 else (1 if p < 9 else (2 if p < 13 else 3))
    return ns * 162 + (p - ((9 * ns + 1) >> 1)) * 36 + hf, 2


def main0(h):
    return 2 * (h & 1)


def rem0(h):
    return 0 if h & 1 else 16


K0_NT = "nt"
K0_SC = "sc1"


def k0_table():
    T = []
    for b in range(177):
        for w in range(4):
            if b < 24:
                sidx = 3 * (b & 7) + (b >> 3)
                ty, h = sidx >> 3, 4 * (sidx & 7) + w
                first, st = ((36, 1), (0, 2), (1, 2))[ty]
                T.append((OFF_WQKVP + h * 73728 + first * 1024, st * 1024, 144 * sidx, OFF_WQKVP + h * 73728 + 55296 + ty * 2304))
            elif b < 96:
                t = 4 * (b - 24) + w
                first, st = f1_slot(t % 9)
                T.append((OFF_WFP + ((t // 9) * 324 + first) * 1024, st * 1024, 128 * (b - 24), 9216))
            elif b < 168:
                fs, cs = divmod(b - 96, 9)
                wv, first, st = f2_slot(2 * cs + (w >> 1), w & 1)
                T.append((OFF_WFP + ((fs * 4 + wv) * 324 + first) * 1024, st * 1024, fs * 576 * 1152 + cs * 128, 1152))
            else:
                cs = b - 168
                first, st = wo_slot(2 * cs + (w >> 1), w & 1)
                T.append((OFF_WOP + first * 1024, st * 1024, cs * 128, 1152))
    return T


LN2 = 0x3F317218
SPIN_MAX = 1 << 17
STAMPOP = "s_memrealtime"
LIMIT = None
FORCE_SLOW = False
PSC = ""
HELP = False
DBGOUT = False
FTWAIT = False

RING, NS = 156, 18
BXV = 12
HB, STAT = 73728, 156672
NAME = "interleave_layers__linear_attn_block__dense_activation_silu__prompt_kernel"


def pstamp(a, i):
    if STAMP:
        a(f"{STAMPOP} s[{60+2*i}:{61+2*i}]")


def breg(ks, mt):
    i = ks * 4 + mt
    return ar(4 * i, 4) if i < 64 else vr(BXV + 4 * (i - 64), 4)


def dma_x_tile(a, srdx):
    a("s_mul_i32 s20, s6, 18432")
    a("v_mov_b32 v249, v2\nv_add_u32 v250, 1024, v2")
    last = None
    for i in range(18):
        if i % 4 == 0:
            if i:
                a("s_add_u32 s20, s20, 4096")
            a("s_mov_b32 m0, s20")
        last = a.vmem(f"buffer_load_dwordx4 v2, s[{srdx}:{srdx+3}], s20 offen offset:{(i%4)*1024} sc1 lds")
    return last


class Ring:
    def __init__(self, a, total):
        self.a = a
        self.t = {}
        self.total = total

    def reg(self, i):
        r = RING + (i % NS) * 4
        return f"v[{r}:{r+3}]"

    def load(self, i):
        if i >= self.total:
            return
        if i % 4 == 0 and i:
            self.a("s_add_u32 s26, s26, 4096")
        self.t[i] = self.a.vmem(f"buffer_load_dwordx4 {self.reg(i)}, v2, s[8:11], s26 offen offset:{(i%4)*1024} sc1")

    def prefill(self):
        self.a("s_mov_b32 s26, 0")
        for i in range(NS):
            self.load(i)


class QRing(Ring):
    def load(self, i):
        if i >= self.total:
            return
        if i < 54 and i % 3 == 2:
            self.t[i] = self.a.vmem(f"buffer_load_dwordx4 {self.reg(i)}, v11, s[8:11], 0 offen offset:{(i//3)*128} sc1")
            return
        j = (i // 3) * 2 + i % 3 if i < 54 else i - 18
        if j % 4 == 0 and j:
            self.a("s_add_u32 s26, s26, 4096")
        self.t[i] = self.a.vmem(f"buffer_load_dwordx4 {self.reg(i)}, v2, s[8:11], s26 offen offset:{(j%4)*1024} sc1")


def q_lane_setup(a):
    a("s_add_u32 s20, s6, 1\ns_and_b32 s20, s20, 3\ns_lshl_b32 s20, s20, 1\ns_add_u32 s21, s20, 1\ns_lshl_b32 s22, s6, 1")
    a("v_bfe_u32 v3, v1, 1, 3\nv_mov_b32 v11, 0x100000")
    a(f"v_mov_b32 v4, {55296+2*2304}\nv_cmp_eq_u32 vcc, s22, v3\nv_cndmask_b32 v11, v11, v4, vcc")
    a(f"v_mov_b32 v4, {55296+2304}\nv_cmp_eq_u32 vcc, s20, v3\nv_cndmask_b32 v11, v11, v4, vcc")
    a(f"v_mov_b32 v4, {55296}\nv_cmp_eq_u32 vcc, s21, v3\nv_cndmask_b32 v11, v11, v4, vcc")
    a("v_lshrrev_b32 v3, 4, v1\nv_lshl_add_u32 v11, v3, 5, v11\nv_and_b32 v3, 1, v1\nv_lshl_add_u32 v11, v3, 4, v11")


def q_ring_setup(a, ring):
    a(f"s_lshl_b32 s21, s3, 2\ns_add_u32 s21, s21, s6\ns_mul_i32 s21, s21, 73728\ns_add_u32 s21, s21, {OFF_WQKVP}")
    srd(a, 8, "s4", "s5", "s21", 73728)
    ring.prefill()


uid = [0]


def cluster_signal(a, sync, last_store):
    uid[0] += 1
    u = uid[0]
    a(f"s_add_u32 s20, s52, {sync*4096}")
    a("v_mov_b32 v3, 1")
    a.wait(vm=last_store)
    a("s_mov_b64 exec, 1")
    a(f"s_cmp_eq_u32 s45, 1\ns_cbranch_scc1 L_sigf{u}")
    a("buffer_wbl2 sc1\ns_waitcnt vmcnt(0)")
    a("buffer_store_dword v3, off, s[56:59], s20 sc1")
    a(f"s_branch L_sigd{u}")
    a(f"L_sigf{u}:")
    a("buffer_store_dword v3, off, s[56:59], s20")
    a(f"L_sigd{u}:")
    a("s_mov_b64 exec, -1")


def cluster_wait(a, off):
    uid[0] += 1
    u = uid[0]
    a("v_and_b32 v3, 31, v1\nv_lshlrev_b32 v3, 2, v3")
    a(f"s_mov_b32 s21, {SPIN_MAX}")
    a(f"L_cw{u}:")
    a(f"buffer_load_dword v4, v3, s[56:59], {off} offen sc1")
    a("s_waitcnt vmcnt(0)")
    a("v_cmp_ne_u32 vcc, 0, v4")
    a("s_sub_u32 s21, s21, 1\ns_nop 0")
    a(f"s_cmp_eq_u32 vcc_lo, -1\ns_cbranch_scc1 L_cwd{u}")
    a(f"s_cmp_lg_u32 s21, 0\ns_cbranch_scc1 L_cw{u}")
    a(f"L_cwd{u}:")
    a(f"s_cmp_eq_u32 s45, 1\ns_cbranch_scc1 L_cwf{u}")
    a("buffer_inv sc1\ns_waitcnt vmcnt(0)")
    a(f"L_cwf{u}:")
    a.vm_done = a.vm


def stats_plan(a, base, wr):
    ST, DSQ, DSUM, ONES, T = base, base + 16, base + 20, base + 24, base + 28
    tk = {}

    def sread(k):
        r = ST + (k % 4) * 4
        tk[k] = a.ds(f"ds_read_b128 v[{r}:{r+3}], v{253+(k&1)} offset:{(k&~1)*1024}")

    def smfma(k):
        r = ST + (k % 4) * 4
        c1 = "0" if k == 0 else f"v[{DSQ}:{DSQ+3}]"
        c2 = "0" if k == 0 else f"v[{DSUM}:{DSUM+3}]"
        a(f"v_mfma_f32_16x16x32_bf16 v[{DSQ}:{DSQ+3}], v[{r}:{r+3}], v[{r}:{r+3}], {c1}")
        a(f"v_mfma_f32_16x16x32_bf16 v[{DSUM}:{DSUM+3}], v[{ONES}:{ONES+3}], v[{r}:{r+3}], {c2}")

    def init():
        a("v_add_u32 v251, 36864, v249\nv_add_u32 v252, 36864, v250")
        a("s_mul_i32 s20, s6, 18432\nv_add_u32 v253, s20, v249\nv_add_u32 v254, s20, v250")
        for j in range(4):
            a(f"v_mov_b32 v{ONES+j}, 0x3f803f80")
        a("s_mov_b32 s36, 0x22222222\ns_mov_b32 s37, 0x22222222\ns_mov_b32 s38, 0x44444444\ns_mov_b32 s39, 0x44444444")
        a("s_mov_b32 s40, 0x88888888\ns_mov_b32 s41, 0x88888888\ns_mov_b32 s42, 0x00f0000f\ns_mov_b32 s43, 0xf0000f00")

    fin = [f"v_cndmask_b32 v{DSQ}, v{DSQ}, v{DSQ+1}, s[36:37]",
           f"v_mul_f32 v{DSUM}, {INV576}, v{DSUM}",
           f"v_cndmask_b32 v{DSQ}, v{DSQ}, v{DSQ+2}, s[38:39]",
           f"v_mul_f32 v{DSUM}, v{DSUM}, v{DSUM}",
           f"v_cndmask_b32 v{DSQ}, v{DSQ}, v{DSQ+3}, s[40:41]",
           f"v_mul_f32 v{DSQ}, {INV576}, v{DSQ}",
           f"v_sub_f32 v{DSQ}, v{DSQ}, v{DSUM}",
           f"v_max_f32 v{DSQ}, 0, v{DSQ}",
           f"v_add_f32 v{DSQ}, {EPS_LN}, v{DSQ}",
           f"v_rsq_f32 v{DSUM}, v{DSQ}"]
    return dict(sread=sread, smfma=smfma, init=init, tk=tk, fin=fin, RS=DSUM, VAR=DSQ, T=T)


def pass0(a, ring, W, accreg, swap, sp, publish, readback, late_fill):
    br = {}

    def bread(ks, mt):
        base = 249 + (ks & 1) + 2 * (mt >> 1)
        br[(ks, mt)] = a.ds(f"ds_read_b128 {breg(ks,mt)}, v{base} offset:{((mt%2)*18+(ks&~1))*1024}")
    for mt in range(4):
        bread(0, mt)
    sp["sread"](0)
    sp["sread"](1)
    for mt in range(4):
        bread(1, mt)
    for ks in range(18):
        lg = br[(ks, 3)]
        if ks < 9:
            lg = max(lg, sp["tk"][2 * ks + 1])
        a.wait(vm=ring.t[ks * W + W - 1], lg=lg)
        pre = []
        if ks < 8:
            pre += [lambda: sp["sread"](2 * ks + 2), lambda: sp["sread"](2 * ks + 3)]
        if ks + 2 < 18:
            pre += [lambda mt=mt: bread(ks + 2, mt) for mt in range(4)]
        fill = []
        if ks == 10:
            fill = list(sp["fin"])
        if ks == 11:
            publish()
        if ks == 13:
            a.wait_lg0()
            a("s_barrier")
            readback()
        if ks >= 15:
            k = (len(late_fill) + (17 - ks)) // (18 - ks)
            fill = late_fill[:k]
            del late_fill[:k]
            if ks == 15:
                a.wait(lg=readback.last)
        i = 0
        for t in range(W):
            for mt in range(4):
                d = accreg(t, mt)
                c = "0" if ks == 0 else f"v[{d}:{d+3}]"
                x, w = breg(ks, mt), ring.reg(ks * W + t)
                if swap:
                    a(f"v_mfma_f32_16x16x32_bf16 v[{d}:{d+3}], {x}, {w}, {c}")
                else:
                    a(f"v_mfma_f32_16x16x32_bf16 v[{d}:{d+3}], {w}, {x}, {c}")
                i += 1
                if pre:
                    pre.pop(0)()
                nf = (len(fill) + (4 * W - i)) // (4 * W + 1 - i)
                for _ in range(nf):
                    a(fill.pop(0))
            if ks < 9 and t < 2:
                sp["smfma"](2 * ks + t)
            ring.load(ks * W + t + NS)
        assert not pre and not fill


def phi_pairs(a, pairs, one, masked=None):
    for (s, m, d, t, e) in pairs:
        a(f"v_pk_mul_f32 v[{t}:{t+1}], v[{s}:{s+1}], {m}")
    for (s, m, d, t, e) in pairs:
        a(f"v_exp_f32_e64 v{e}, v{t} clamp\nv_exp_f32_e64 v{e+1}, v{t+1} clamp")
    for (s, m, d, t, e) in pairs:
        a(f"v_pk_fma_f32 v[{t}:{t+1}], v[{t}:{t+1}], s[22:23], {one}")
    if masked:
        a(f"s_mov_b64 exec, {masked}")
    for (s, m, d, t, e) in pairs:
        a(f"v_max_f32 v{t}, v{t}, v{e}\nv_max_f32 v{t+1}, v{t+1}, v{e+1}")
    for (s, m, d, t, e) in pairs:
        a(f"v_pk_add_f32 v[{t}:{t+1}], v[{t}:{t+1}], s[24:25]")
    if masked:
        a("s_mov_b64 exec, -1")
    for (s, m, d, t, e) in pairs:
        a(f"v_cvt_pk_bf16_f32 v{d}, v{t}, v{t+1}")


def phase_q(a, ring):
    ACC = 44
    KA, VA, RA, QA = ACC, ACC + 16, ACC + 32, ACC + 48
    C2, RS2, C1 = 140, 228, 244
    sp = stats_plan(a, 108, None)
    sp["init"]()
    a("v_and_b32 v5, 15, v1\nv_lshrrev_b32 v6, 4, v1")
    a(f"s_lshl_b32 s20, s6, 6\ns_add_u32 s20, s20, {STAT}")
    a("v_lshl_add_u32 v7, v5, 2, s20")
    a(f"v_lshlrev_b32 v8, 2, v5\nv_add_u32 v8, {STAT}, v8")
    a(f"v_lshlrev_b32 v9, 4, v6\nv_add_u32 v9, {STAT}, v9")
    a(f"s_lshl_b32 s22, s7, 16\ns_add_u32 s22, s22, {L_PQM}")
    srd(a, 16, "s48", "s49", "s22", 65536)
    a(f"s_lshl_b32 s22, s7, 3\ns_add_u32 s22, s22, s3\ns_lshl_b32 s22, s22, 10\ns_add_u32 s22, s22, {L_QREM}")
    srd(a, 28, "s48", "s49", "s22", 1024)
    a(f"s_mul_i32 s22, s3, 6144\ns_mul_i32 s23, s44, 49152\ns_add_u32 s22, s22, s23\ns_add_u32 s22, s22, {OFF_Z+Z_KV}")
    srd(a, 32, "s4", "s5", "s22", 6144)

    def publish():
        a(f"v_mul_f32 v{sp['T']}, {LOG2E}, v{sp['RS']}")
        a("s_mov_b64 exec, s[42:43]")
        a.ds(f"ds_write_b32 v7, v{sp['RS']}")
        a.ds(f"ds_write_b32 v7, v{sp['T']} offset:256")
        a("s_mov_b64 exec, -1")

    def readback():
        for mt in range(4):
            a.ds(f"ds_read_b128 v[{C2+4*mt}:{C2+4*mt+3}], v9 offset:{256+64*mt}")
        for mt in range(4):
            a.ds(f"ds_read_b128 v[{RS2+4*mt}:{RS2+4*mt+3}], v9 offset:{64*mt}")
        for mt in range(4):
            readback.last = a.ds(f"ds_read_b32 v{C1+mt}, v8 offset:{256+64*mt}")
    SEL, OA, OB, OQ, OR_, ONEL = 124, 130, 131, 132, 133, 134
    late = []
    late += ["v_lshlrev_b32 v10, 2, v6", "v_sub_u32 v10, v5, v10"]
    late += [f"v_mov_b32 v{SEL+j}, 0" for j in range(6)]
    late += ["v_mov_b32 v136, 0x3f80", "v_mov_b32 v137, 0x3f800000"]
    for d in range(4):
        late += [f"v_cmp_eq_u32 vcc, {d}, v10", f"v_lshlrev_b32 v{OA}, 2, v1" if d == 0 else "s_nop 0", "s_nop 0",
                 f"v_cndmask_b32 v{SEL+2+(d>>1)}, v{SEL+2+(d>>1)}, v{136+(d&1)}, vcc"]
    late += [f"v_and_b32 v{OB}, 3, v5", f"v_lshl_add_u32 v{OB}, v6, 2, v{OB}", f"v_lshlrev_b32 v{OB}, 2, v{OB}"]
    pstamp(a, 0)
    a("s_cmp_eq_u32 s44, 0\ns_cbranch_scc1 L_q_xok")
    a("s_waitcnt vmcnt(0)\ns_barrier")
    a("L_q_xok:")
    pstamp(a, 1)
    pass0(a, ring, 3, lambda t, mt: ACC + t * 16 + mt * 4, True, sp, publish, readback, late)
    pstamp(a, 2)
    a("s_add_u32 s27, s6, 1\ns_and_b32 s27, s27, 3")
    a("s_lshl_b32 s20, s27, 4\ns_mov_b64 s[36:37], 0xffff\ns_lshl_b64 s[36:37], s[36:37], s20")
    a("s_mov_b32 s38, 0x000f000f\ns_mov_b32 s39, 0x000f000f\ns_lshl_b32 s20, s6, 2\ns_lshl_b64 s[38:39], s[38:39], s20")
    a("s_mov_b32 s40, 0x00030003\ns_mov_b32 s41, 0x00030003\ns_lshl_b64 s[40:41], s[40:41], s20\ns_not_b64 s[40:41], s[40:41]")
    a("s_and_b64 s[42:43], s[36:37], s[38:39]")
    a(f"s_mov_b32 s22, {LN2}\ns_mov_b32 s23, {LN2}\ns_mov_b32 s24, {EPS_6}\ns_mov_b32 s25, {EPS_6}")
    a(f"v_cndmask_b32 v{ONEL}, 0, 1.0, s[40:41]")
    T1, T2 = 108, 116
    for h in range(2):
        phi_pairs(a, [(KA + 8 * h + 2 * i, f"v[{C2+8*h+2*i}:{C2+8*h+2*i+1}]", KA + 4 * h + i, T1 + 2 * i, T2 + 2 * i) for i in range(4)],
                  "1.0 op_sel_hi:[1,1,0]")
    for i in range(8):
        a(f"v_pk_mul_f32 v[{VA+2*i}:{VA+2*i+1}], v[{VA+2*i}:{VA+2*i+1}], v[{RS2+2*i}:{RS2+2*i+1}]")
    for i in range(8):
        a(f"v_cvt_pk_bf16_f32 v{VA+i}, v{VA+2*i}, v{VA+2*i+1}")
    MM, MR, RM, RR = 52, 56, 68, 72
    a(f"v_mfma_f32_16x16x32_bf16 v[{MM}:{MM+3}], v[{KA}:{KA+3}], v[{VA}:{VA+3}], 0")
    a(f"v_mfma_f32_16x16x32_bf16 v[{MM}:{MM+3}], v[{KA+4}:{KA+7}], v[{VA+4}:{VA+7}], v[{MM}:{MM+3}]")
    for h in range(2):
        phi_pairs(a, [(RA + 8 * h + 2 * i, f"v[{C2+8*h+2*i}:{C2+8*h+2*i+1}]", RA + 4 * h + i, T1 + 2 * i, T2 + 2 * i) for i in range(4)],
                  f"v[{ONEL}:{ONEL+1}] op_sel_hi:[1,1,0]", masked="s[40:41]")
        if h == 0:
            a("s_lshl_b32 s20, s6, 10")
            for r in range(4):
                a.vmem(f"buffer_atomic_add_f32 v{MM+r}, v{OA}, s[32:35], s20 offen offset:{r*256}")
    for s in range(2):
        for (d, x, y) in ((MR, KA, RA), (RM, RA, VA), (RR, RA, RA)):
            c = "0" if s == 0 else f"v[{d}:{d+3}]"
            a(f"v_mfma_f32_16x16x32_bf16 v[{d}:{d+3}], v[{x+4*s}:{x+4*s+3}], v[{y+4*s}:{y+4*s+3}], {c}")
    DT = 108
    for mt in range(4):
        sel = SEL + 2 if mt % 2 == 0 else SEL
        x = RA + 4 * (mt >> 1)
        a(f"v_mfma_f32_16x16x32_bf16 v[{DT+4*mt}:{DT+4*mt+3}], v[{x}:{x+3}], v[{sel}:{sel+3}], 0")
    a("s_lshl_b32 s20, s6, 6\ns_add_u32 s20, s20, 4096\ns_mov_b32 s21, 4096")
    a("s_mov_b64 exec, s[38:39]")
    for r in range(4):
        a.vmem(f"buffer_atomic_add_f32 v{MR+r}, v{OB}, s[32:35], s20 offen offset:{r*256}")
    a("s_mov_b64 exec, s[42:43]")
    for r in range(2):
        a.vmem(f"buffer_atomic_add_f32 v{RR+r}, v{OA}, s[32:35], s21 offen offset:{1536+r*256}")
    a("s_mov_b64 exec, s[36:37]")
    for r in range(2):
        atom = a.vmem(f"buffer_atomic_add_f32 v{RM+r}, v{OA}, s[32:35], s21 offen offset:{1024+r*256}")
    a(f"v_add_u32 v{OR_}, {HB+8192}, v{OA}")
    for mt in range(4):
        a(f"v_cvt_pk_bf16_f32 v{DT+4*mt}, v{DT+4*mt+2}, v{DT+4*mt+3}")
        a.ds(f"ds_write_b32 v{OR_}, v{DT+4*mt} offset:{mt*256}")
    a("s_mov_b64 exec, -1")
    pstamp(a, 3)
    a.wait(vm=ring.t[71])
    for ks in range(18):
        for mt in range(4):
            d = QA + 4 * mt
            c = "0" if ks == 0 else f"v[{d}:{d+3}]"
            a(f"v_mfma_f32_16x16x32_bf16 v[{d}:{d+3}], {ring.reg(54 + ks)}, {breg(ks, mt)}, {c}")
    a("s_lshr_b32 s20, s6, 1\ns_lshl_b32 s20, s20, 10")
    a(f"s_and_b32 s21, s6, 1\ns_lshl_b32 s21, s21, 3\ns_add_u32 s20, s20, s21\ns_add_u32 s20, s20, {HB}")
    a(f"v_add_u32 v{OQ}, s20, v2")
    last = None
    T1, T2 = 140, 148
    for h in range(2):
        prs = []
        for i in range(4):
            mt = 2 * h + (i >> 1)
            c = C1 + (mt & ~1)
            sel = "op_sel_hi:[1,0]" if mt % 2 == 0 else "op_sel:[0,1]"
            prs.append((QA + 8 * h + 2 * i, f"v[{c}:{c+1}] {sel}", QA + 4 * h + i, T1 + 2 * i, T2 + 2 * i))
        phi_pairs(a, prs, "1.0 op_sel_hi:[1,1,0]")
        for mt in (2 * h, 2 * h + 1):
            a.ds(f"ds_write_b64 v{OQ}, v[{QA+2*mt}:{QA+2*mt+1}] offset:{mt*2048}")
    a(f"s_lshl_b32 s20, s6, 11\ns_add_u32 s20, s20, {HB}\nv_add_u32 v{OQ}, s20, v2")
    a(f"s_lshl_b32 s21, s6, 8\ns_add_u32 s20, s21, {HB+8192}\nv_add_u32 v{OR_}, s20, v2")
    a(f"s_lshl_b32 s20, s44, 13\ns_add_u32 s20, s20, {Z_GF}\ns_and_b32 s22, s2, 63\ns_lshl_b32 s22, s22, 7\ns_add_u32 s20, s20, s22")
    a("s_lshr_b32 s22, s2, 6\ns_lshl_b32 s22, s22, 2\ns_add_u32 s22, s22, s20")
    a("v_mov_b32 v3, 1")
    a.wait(vm=atom, lg=a.lg)
    a("s_barrier")
    pstamp(a, 4)
    a("s_cmp_lg_u32 s6, 0\ns_cbranch_scc1 L_q_noarr")
    a("s_mov_b64 exec, 1")
    a("buffer_store_dword v3, off, s[56:59], s22 sc1")
    a("s_mov_b64 exec, -1")
    a("L_q_noarr:")
    t0 = a.ds(f"ds_read_b128 v[{QA}:{QA+3}], v{OQ}")
    t1 = a.ds(f"ds_read_b128 v[{QA+4}:{QA+7}], v{OQ} offset:1024")
    t2 = a.ds(f"ds_read_b128 v[{QA+8}:{QA+11}], v{OR_}")
    a("s_lshl_b32 s20, s6, 14\ns_lshl_b32 s22, s3, 11\ns_add_u32 s20, s20, s22")
    a.wait(lg=t0)
    a.vmem(f"buffer_store_dwordx4 v[{QA}:{QA+3}], v2, s[16:19], s20 offen sc1")
    a.wait(lg=t1)
    a.vmem(f"buffer_store_dwordx4 v[{QA+4}:{QA+7}], v2, s[16:19], s20 offen offset:1024 sc1")
    a.wait(lg=t2)
    a("s_mov_b64 exec, 0xffff")
    last = a.vmem(f"buffer_store_dwordx4 v[{QA+8}:{QA+11}], v2, s[28:31], s21 offen sc1")
    a("s_mov_b64 exec, -1")
    return last


O_EARLY = 8


def o_prefetch(a, part):
    if part == 0:
        a(f"s_mul_i32 s24, s54, {162*1024}\ns_add_u32 s24, s24, {OFF_WOP}")
        srd(a, 28, "s4", "s5", "s24", 162 * 1024)
        a("s_mul_i32 s27, s6, 36864")
    for i in (range(O_EARLY) if part == 0 else range(O_EARLY, 36)):
        if i % 4 == 0 and i:
            a("s_add_u32 s27, s27, 4096")
        a.vmem(f"buffer_load_dwordx4 a[{4*i}:{4*i+3}], v2, s[28:31], s27 offen offset:{(i%4)*1024} sc1")
    if part == 0:
        a(f"s_mul_i32 s21, s53, 36864\ns_add_u32 s22, s21, {OFF_XA}")
        srd(a, 32, "s4", "s5", "s22", 36864)
        a("s_mul_i32 s40, s54, 9\ns_add_u32 s40, s40, 1\ns_lshr_b32 s40, s40, 1\ns_add_u32 s40, s40, s6\ns_lshl_b32 s40, s40, 10")
        a("s_add_u32 s41, s40, 18432")
        a("s_lshr_b32 s42, s54, 1\ns_mul_i32 s42, s42, 9\ns_add_u32 s42, s42, 4\ns_lshl_b32 s42, s42, 10")
        a("s_and_b32 s43, s54, 1\ns_lshl_b32 s43, s43, 3\ns_add_u32 s42, s42, s43\ns_add_u32 s43, s42, 18432")


def grid_barrier(a, last_store):
    a(f"s_add_u32 s20, s52, {3*4096}")
    a.wait(vm=last_store)
    a("s_mov_b64 exec, 1")
    a.vmem("buffer_store_dword v3, off, s[56:59], s20 sc1")
    a("s_mov_b64 exec, -1")
    o_prefetch(a, 1)
    a("s_cmp_lg_u32 s6, 0\ns_cbranch_scc1 L_gb_noh")
    a(f"s_mov_b32 s21, {144*1024}")
    for i in range(18):
        if i % 4 == 0 and i:
            a("s_add_u32 s21, s21, 4096")
        a(f"buffer_load_dwordx4 a[{144+4*i}:{144+4*i+3}], v2, s[28:31], s21 offen offset:{(i%4)*1024} sc1")
    a("L_gb_noh:")
    a("s_cmp_lg_u32 s6, 3\ns_cbranch_scc1 L_gb_done")
    a(f"s_lshl_b32 s20, s44, 13\ns_add_u32 s20, s20, {Z_GF}\ns_add_u32 s22, s51, {3*4096}")
    a("v_and_b32 v8, 31, v1\nv_lshlrev_b32 v8, 2, v8\nv_lshlrev_b32 v9, 7, v1")
    a(f"s_mov_b32 s21, {SPIN_MAX}")
    a("L_gb_spin:")
    a("buffer_load_dwordx4 v[4:7], v9, s[56:59], s20 offen sc1")
    a("buffer_load_dword v3, v8, s[56:59], s22 offen sc1")
    a("s_waitcnt vmcnt(0)")
    a("v_and_b32 v4, v4, v5\nv_and_b32 v6, v6, v7\nv_and_b32 v4, v4, v3\nv_and_b32 v4, v4, v6")
    a("v_cmp_ne_u32 vcc, 0, v4")
    a("s_sub_u32 s21, s21, 1\ns_nop 0")
    a("s_cmp_eq_u64 vcc, exec\ns_cbranch_scc1 L_gb_done")
    a("s_cmp_lg_u32 s21, 0\ns_cbranch_scc1 L_gb_spin")
    a("L_gb_done:")
    a("s_barrier")


def phase_o_setup(a):
    a(f"s_mul_i32 s21, s6, 12288\ns_mul_i32 s22, s44, 49152\ns_add_u32 s21, s21, s22\ns_add_u32 s21, s21, {OFF_Z+Z_KV}")
    srd(a, 8, "s4", "s5", "s21", 12288)
    a(f"s_lshl_b32 s22, s53, 15\ns_add_u32 s22, s22, {L_PQM}")
    srd(a, 12, "s48", "s49", "s22", 32768)
    a(f"s_lshl_b32 s23, s7, 13\ns_add_u32 s23, s23, {L_QREM}")
    srd(a, 16, "s48", "s49", "s23", 8192)
    a("v_lshlrev_b32 v252, 2, v1")
    a("v_and_b32 v253, 3, v1\nv_lshrrev_b32 v254, 4, v1\nv_lshl_add_u32 v253, v254, 2, v253")
    a("v_and_b32 v254, 12, v1\nv_lshl_add_u32 v253, v254, 2, v253\nv_lshlrev_b32 v253, 2, v253")


def phase_o(a, ring):
    KVR, BR, A12, D1, D2 = 8, 56, 108, 172, 236
    kvt = {}
    a(f"s_and_b32 s20, s2, 7\ns_lshl_b32 s20, s20, 7\ns_add_u32 s20, s20, {Z_XM}")
    xm = a.vmem("buffer_load_dword v3, off, s[56:59], s20 sc1")
    for G in range(2):
        b = KVR + 24 * G
        a(f"s_mov_b32 s20, {6144*G+4096}")
        for r in range(4):
            a.vmem(f"buffer_load_dword v{b+16+r}, v253, s[8:11], s20 offen offset:{r*256} sc1")
        for r in range(4):
            a.vmem(f"buffer_load_dword v{b+20+r}, v252, s[8:11], s20 offen offset:{1024+r*256} sc1")
        a(f"s_mov_b32 s20, {6144*G}")
        for i in range(16):
            kvt[G] = a.vmem(f"buffer_load_dword v{b+i}, v252, s[8:11], s20 offen offset:{i*256} sc1")
    a("s_lshl_b32 s20, s6, 11\ns_and_b32 s21, s53, 1\ns_lshl_b32 s21, s21, 9\ns_add_u32 s20, s20, s21")
    for mt in range(2):
        b = BR + 26 * mt
        for G in range(2):
            a.vmem(f"buffer_load_dword v{b+G}, v252, s[16:19], s20 offen offset:{G*1024+mt*256} sc1")
    for mt in range(2):
        a(f"s_lshl_b32 s20, s6, 12\ns_add_u32 s20, s20, {mt*16384}")
        for q in range(4):
            b = BR + 26 * mt + 6 * q + 2
            pqt = a.vmem(f"buffer_load_dwordx4 v[{b}:{b+3}], v2, s[12:15], s20 offen offset:{q*1024} sc1")
    for mt in range(2):
        a.vmem(f"buffer_load_dwordx4 a[{216+4*mt}:{216+4*mt+3}], v2, s[32:35], s{40+mt} offen sc1")
    for mt in range(2):
        rest = a.vmem(f"buffer_load_dwordx2 a[{224+2*mt}:{224+2*mt+1}], v2, s[32:35], s{42+mt} offen sc1")
    M1, M0 = 12, 20

    def aslots(hh):
        G = hh >> 2
        if hh & 1 == 0:
            return 2, G, 1 - G
        return 0, 2 + G, 3 - G
    for hh in range(8):
        mb, ru, rz = aslots(hh)
        a(f"v_mov_b32 v{A12+8*hh+rz}, 0\nv_mov_b32 v{A12+8*hh+4+rz}, 0")
    a(f"s_lshl_b32 s20, s6, 13\ns_add_u32 s20, s20, {HB}\nv_add_u32 v6, s20, v2")
    a(f"s_lshr_b32 s20, s6, 1\ns_lshl_b32 s20, s20, 11\ns_and_b32 s25, s6, 1\ns_lshl_b32 s25, s25, 3\ns_add_u32 s20, s20, s25\ns_add_u32 s20, s20, {HB+32768}")
    a(f"v_add_u32 v7, s20, v2\nv_add_u32 v5, {HB}, v2")
    for j in range(4):
        m1 = 0x000f000f << (4 * j)
        a(f"s_mov_b32 s{M1+2*j}, {m1}\ns_mov_b32 s{M1+1+2*j}, {m1}")
        m0 = 0xffff << (16 * ((j + 1) & 3))
        a(f"s_mov_b32 s{M0+2*j}, {m0 & 0xffffffff}\ns_mov_b32 s{M0+1+2*j}, {m0 >> 32}")
    for G in range(2):
        b = KVR + 24 * G
        a.wait(vm=kvt[G])
        if G == 0:
            pstamp(a, 6)
            a("v_readfirstlane_b32 s45, v3")
        a(f"v_cvt_pk_bf16_f32 v{b+16}, v{b+16}, v{b+17}")
        a(f"v_cvt_pk_bf16_f32 v{b+17}, v{b+18}, v{b+19}")
        a(f"v_cvt_pk_bf16_f32 v{b+20}, v{b+20}, v{b+21}")
        a(f"v_cvt_pk_bf16_f32 v{b+22}, v{b+22}, v{b+23}")
        if G == 0:
            a("s_bcnt1_i32_b32 s45, s45")
            if FORCE_SLOW:
                a("s_mov_b32 s45, 2")
        for j in range(4):
            hh = 4 * G + j
            mb, ru, rz = aslots(hh)
            a1, a2 = A12 + 8 * hh, A12 + 8 * hh + 4
            a(f"v_cvt_pk_bf16_f32 v{a1+mb}, v{b+4*j}, v{b+4*j+1}")
            a(f"v_cvt_pk_bf16_f32 v{a1+mb+1}, v{b+4*j+2}, v{b+4*j+3}")
            a(f"v_cndmask_b32 v{a1+ru}, 0, v{b+20}, s[{M0+2*j}:{M0+1+2*j}]")
            a(f"v_cndmask_b32 v{a2+mb}, 0, v{b+16}, s[{M1+2*j}:{M1+1+2*j}]")
            a(f"v_cndmask_b32 v{a2+mb+1}, 0, v{b+17}, s[{M1+2*j}:{M1+1+2*j}]")
            a(f"v_cndmask_b32 v{a2+ru}, 0, v{b+22}, s[{M1+2*j}:{M1+1+2*j}]")
    a.wait(vm=pqt)
    for mt in range(2):
        b = BR + 26 * mt
        for q in range(1, 5):
            a(f"v_mov_b64 v[{b+6*q}:{b+6*q+1}], v[{b}:{b+1}]")

    def bop(hh, mt):
        q = hh >> 1
        b = BR + 26 * mt + 6 * q + (0 if hh & 1 == 0 else 4)
        return f"v[{b}:{b+3}]"
    for hh in range(8):
        for mt in range(2):
            d = D2 + 8 * (hh >> 2) + 4 * mt
            c = "0" if hh & 3 == 0 else f"v[{d}:{d+3}]"
            a2 = A12 + 8 * hh + 4
            a(f"v_mfma_f32_16x16x32_bf16 v[{d}:{d+3}], v[{a2}:{a2+3}], {bop(hh,mt)}, {c}")
    RC, ORM = 8, 24
    post = []
    for G in range(2):
        for mt in range(2):
            d, rc = D2 + 8 * G + 4 * mt, RC + 8 * G + 4 * mt
            post += [f"v_add_f32 v{rc}, {EPS_6}, v{d+3}"]
    for i in range(4):
        post += [f"v_rcp_f32 v{RC+4*i}, v{RC+4*i}"]
    for G in range(2):
        for mt in range(2):
            d, rc = D2 + 8 * G + 4 * mt, RC + 8 * G + 4 * mt
            post += [f"v_mov_b32 v{rc+1}, v{rc}", f"v_mul_f32 v{d}, v{d}, v{rc}", f"v_mul_f32 v{d+1}, v{d+1}, v{rc}"]
    for i in range(4):
        post += [f"v_permlane16_swap_b32 v{RC+4*i}, v{RC+4*i+1}"]
    n = 0
    for hh in range(8):
        for mt in range(2):
            d = D1 + 8 * hh + 4 * mt
            a1 = A12 + 8 * hh
            a(f"v_mfma_f32_16x16x32_bf16 v[{d}:{d+3}], v[{a1}:{a1+3}], {bop(hh,mt)}, 0")
            n += 1
            if n >= 5:
                for _ in range(2):
                    a(post.pop(0))
    assert not post
    for i in range(4):
        rc = RC + 4 * i
        a(f"v_mov_b64 v[{rc+2}:{rc+3}], v[{rc}:{rc+1}]")
    for G in range(2):
        for mt in range(2):
            d = D2 + 8 * G + 4 * mt
            a(f"v_cvt_pk_bf16_f32 v{ORM+2*mt+G}, v{d}, v{d+1}")
    for i in range(4):
        rc = RC + 4 * i
        a(f"v_permlane32_swap_b32 v{rc}, v{rc+2}")
        a(f"v_permlane32_swap_b32 v{rc+1}, v{rc+3}")
    for mt in range(2):
        a.ds(f"ds_write_b64 v7, v[{ORM+2*mt}:{ORM+2*mt+1}] offset:{mt*1024}")
    OF = 28
    n = 0
    for q in range(4):
        for mt in range(2):
            o = OF + 4 * (n % 4)
            n += 1
            for s in range(2):
                hh = 2 * q + s
                d = D1 + 8 * hh + 4 * mt
                rc = RC + 8 * (hh >> 2) + 4 * mt + (hh & 2)
                sel = "op_sel_hi:[1,0]" if s == 0 else "op_sel:[0,1]"
                a(f"v_pk_mul_f32 v[{d}:{d+1}], v[{d}:{d+1}], v[{rc}:{rc+1}] {sel}")
                a(f"v_pk_mul_f32 v[{d+2}:{d+3}], v[{d+2}:{d+3}], v[{rc}:{rc+1}] {sel}")
            for s in range(2):
                d = D1 + 8 * (2 * q + s) + 4 * mt
                a(f"v_cvt_pk_bf16_f32 v{o+2*s}, v{d}, v{d+1}")
                a(f"v_cvt_pk_bf16_f32 v{o+2*s+1}, v{d+2}, v{d+3}")
            a.ds(f"ds_write_b128 v6, v[{o}:{o+3}] offset:{(2*q+mt)*1024}")
    a.wait_lg0()
    a("s_barrier")
    pstamp(a, 7)
    def oreg(i):
        r = 8 + 4 * i
        return f"v[{r}:{r+3}]"
    ACC = 228
    ot = {}
    for i in range(12):
        ot[i] = a.ds(f"ds_read_b128 {oreg(i)}, v5 offset:{i*1024}")
    a(f"s_lshl_b32 s21, s3, 2\ns_add_u32 s21, s21, s6\ns_mul_i32 s21, s21, {324*1024}")
    srd(a, 8, "s4", "s5", "s21", 324 * 1024)
    a("s_mov_b32 s26, 0")
    nxt = 12
    for ks in range(18):
        a.wait(lg=ot[2 * ks + 1])
        for hf in range(2):
            for mt in range(2):
                d = ACC + 8 * hf + 4 * mt
                w = 4 * (2 * ks + hf)
                c = "0" if ks == 0 else f"v[{d}:{d+3}]"
                a(f"v_mfma_f32_16x16x32_bf16 v[{d}:{d+3}], a[{w}:{w+3}], {oreg(2*ks+mt)}, {c}")
                if nxt < 36 and mt == 0:
                    ot[nxt] = a.ds(f"ds_read_b128 {oreg(nxt)}, v5 offset:{nxt*1024}")
                    nxt += 1
        ring.load(ks)
    a.wait(vm=rest)
    a("s_cmp_lg_u32 s6, 0\ns_cbranch_scc1 L_o_noh")
    for ks in range(18):
        for mt in range(2):
            d = ACC + 16 + 4 * mt
            w = 144 + 4 * ks
            c = "0" if ks == 0 else f"v[{d}:{d+3}]"
            a(f"v_mfma_f32_16x16x32_bf16 v[{d}:{d+3}], a[{w}:{w+3}], {oreg(2*ks+mt)}, {c}")
    for mt in range(2):
        d = ACC + 16 + 4 * mt
        for j in range(2):
            a(f"v_accvgpr_read_b32 v{8+j}, a{224+2*mt+j}")
        for j in range(2):
            a(f"v_lshlrev_b32 v{10+2*j}, 16, v{8+j}\nv_and_b32 v{11+2*j}, 0xffff0000, v{8+j}")
        for r in range(4):
            a(f"v_add_f32 v{d+r}, v{d+r}, v{10+r}")
        a(f"v_cvt_pk_bf16_f32 v{d}, v{d}, v{d+1}\nv_cvt_pk_bf16_f32 v{d+1}, v{d+2}, v{d+3}")
        a(f"buffer_store_dwordx2 v[{d}:{d+1}], v2, s[32:35], s{42+mt} offen")
    a("L_o_noh:")
    last = None
    for mt in range(2):
        t = 16 + 16 * mt
        for j in range(4):
            a(f"v_accvgpr_read_b32 v{t+j}, a{216+4*mt+j}")
        for j in range(4):
            a(f"v_lshlrev_b32 v{t+4+2*j}, 16, v{t+j}\nv_and_b32 v{t+5+2*j}, 0xffff0000, v{t+j}")
        for hf in range(2):
            d = ACC + 8 * hf + 4 * mt
            for r in (0, 2):
                a(f"v_pk_add_f32 v[{t+4+4*hf+r}:{t+5+4*hf+r}], v[{d+r}:{d+r+1}], v[{t+4+4*hf+r}:{t+5+4*hf+r}]")
        for j in range(4):
            a(f"v_cvt_pk_bf16_f32 v{t+j}, v{t+4+2*j}, v{t+5+2*j}")
        last = a.vmem(f"buffer_store_dwordx4 v[{t}:{t+3}], v2, s[32:35], s{40+mt} offen")
    return last


def phase_f(a, ring):
    a(f"s_mul_i32 s21, s7, 73728\ns_add_u32 s22, s21, {OFF_XA}")
    srd(a, 12, "s4", "s5", "s22", 73728)
    xt = dma_x_tile(a, 12)
    SETS = (44, 108)
    TMP = 228
    VH0, VH1, VWA, VWB, VWC, VST = 5, 6, 7, 8, 9, 10
    VPA, VPB, VPC, VXW, VXR = TMP + 16, TMP + 17, TMP + 18, TMP + 19, TMP + 20
    sp = stats_plan(a, SETS[1], None)
    sp["init"]()
    a(f"v_add_u32 v{VH0}, {HB}, v2\nv_add_u32 v{VH1}, {HB+36864}, v2")
    a(f"s_lshl_b32 s20, s6, 13\nv_add_u32 v{VWA}, s20, v{VH0}")
    a(f"s_lshl_b32 s20, s6, 12\nv_add_u32 v{VWB}, s20, v{VH0}")
    a("s_lshr_b32 s24, s6, 1\ns_and_b32 s25, s6, 1")
    a(f"s_lshl_b32 s20, s24, 12\ns_lshl_b32 s22, s25, 3\ns_add_u32 s20, s20, s22\nv_add_u32 v{VXW}, s20, v2")
    a(f"v_add_u32 v{VWC}, {HB+49152}, v{VXW}")
    a(f"s_lshl_b32 s20, s6, 11\nv_add_u32 v{VPA}, s20, v2")
    a(f"s_lshl_b32 s20, s6, 10\nv_add_u32 v{VPB}, s20, v2")
    a(f"s_add_u32 s20, s24, 4\ns_lshl_b32 s20, s20, 10\ns_mul_i32 s22, s25, 36864\ns_add_u32 s20, s20, s22\nv_add_u32 v{VPC}, s20, v2")
    a(f"s_mul_i32 s22, s3, {XF_BYTES}\ns_add_u32 s22, s22, s21\ns_add_u32 s22, s22, {OFF_PART}")
    srd(a, 16, "s4", "s5", "s22", 73728)
    a(f"v_and_b32 v{VST}, 15, v1\nv_lshlrev_b32 v{VST}, 3, v{VST}\nv_add_u32 v{VST}, {STAT}, v{VST}")
    CS = TMP
    ST1 = TMP + 8
    T = sp["T"]

    def publish():
        a(f"v_mul_f32 v{T+1}, v{sp['VAR']}, v{sp['RS']}")
        a(f"v_mul_f32 v{T}, {NLOG2E}, v{sp['RS']}")
        a(f"s_lshl_b32 s20, s6, 7\nv_add_u32 v{T+2}, s20, v{VST}")
        a("s_mov_b64 exec, s[42:43]")
        a.ds(f"ds_write_b64 v{T+2}, v[{T}:{T+1}]")
        a("s_mov_b64 exec, -1")

    def readback():
        for mt in range(4):
            readback.last = a.ds(f"ds_read_b64 v[{CS+2*mt}:{CS+2*mt+1}], v{VST} offset:{128*mt}")
    br = {}

    def hread(ks, mt):
        base = f"v{VH0}" if ks < 9 else f"v{VH1}"
        br[(ks, mt)] = a.ds(f"ds_read_b128 {breg(ks,mt)}, {base} offset:{((ks%9)*4+mt)*1024}")

    def acc(ps, t, mt):
        return SETS[ps % 2] + (t * 4 + mt) * 4

    def silu_fill(ps):
        out = []
        n = 0
        for t in range(FW[ps]):
            for mt in range(4):
                d = acc(ps, t, mt)
                pk = acc(ps, t & ~1, mt) + 2 * (t & 1)
                tm = ST1 + 4 * (n % 2)
                n += 1
                c1, sd = CS + 2 * mt, CS + 2 * mt + 1
                out += [f"v_mul_f32 v{tm+r}, v{d+r}, v{c1}" for r in range(4)]
                out += [f"v_exp_f32 v{tm+r}, v{tm+r}" for r in range(4)]
                out += [f"v_fma_f32 v{tm+r}, v{tm+r}, v{sd}, v{sd}" for r in range(4)]
                out += [f"v_rcp_f32 v{tm+r}, v{tm+r}" for r in range(4)]
                out += [f"v_mul_f32 v{tm+r}, v{d+r}, v{tm+r}" for r in range(4)]
                out += [f"v_cvt_pk_bf16_f32 v{pk}, v{tm}, v{tm+1}", f"v_cvt_pk_bf16_f32 v{pk+1}, v{tm+2}, v{tm+3}"]
                if t & 1:
                    v, off = ((VWA, (t >> 1) * 4096), (VWB, 32768), (VWB, 57344))[ps]
                    out.append(("ds", f"ds_write_b128 v{v}, v[{pk-2}:{pk+1}] offset:{off+mt*1024}"))
                elif t == FW[ps] - 1:
                    out.append(("ds", f"ds_write_b64 v{VWC}, v[{pk}:{pk+1}] offset:{mt*1024}"))
        return out

    def store_fill(ps):
        out = []
        order = [2, 0, 1] if ps == 3 else range(FW[ps])
        for t in order:
            for mt in range(4):
                d = acc(ps, t, mt)
                pk = acc(ps, t & ~1, mt) + 2 * (t & 1)
                out += [f"v_cvt_pk_bf16_f32 v{pk}, v{d}, v{d+1}", f"v_cvt_pk_bf16_f32 v{pk+1}, v{d+2}, v{d+3}"]
                if t & 1:
                    v, off = {3: (VPB, 0), 4: (VPA, 6144 + (t >> 1) * 1024), 5: (VPB, 14336)}[ps]
                    out.append(f"s_mov_b32 s20, {mt*18432+off}")
                    out.append(("vm", f"buffer_store_dwordx4 v[{pk-2}:{pk+1}], v{v}, s[16:19], s20 offen {PSC}"))
                elif t == FW[ps] - 1:
                    out.append(("ds", f"ds_write_b64 v{VXW}, v[{pk}:{pk+1}] offset:{mt*1024}"))
        return out

    def emit(f):
        if isinstance(f, tuple):
            return (a.ds if f[0] == "ds" else a.vmem)(f[1])
        a(f)

    def cost(f):
        if isinstance(f, tuple):
            return 1
        return 2 if f.startswith(("v_exp", "v_rcp")) else 1

    a.wait(vm=xt)
    a("s_barrier")
    pstamp(a, 10)
    pass0(a, ring, FW[0], lambda t, mt: acc(0, t, mt), False, sp, publish, readback, [])
    xr = {}
    for ps in range(1, 6):
        W = FW[ps]
        fill = silu_fill(ps - 1) if ps <= 3 else store_fill(ps - 1)
        fsteps = {1: 18, 2: 18, 3: 12, 4: 8, 5: 12}[ps]
        total = sum(cost(f) for f in fill)
        spent = 0
        for ks in range(18):
            i0 = FBASE[ps] + ks * W
            a.wait(vm=ring.t[i0 + W - 1], lg=br[(ks, 3)] if ps == 3 else None)
            pre = []
            if (ps, ks) in ((2, 1), (3, 5), (3, 12), (4, 9)):
                if (ps, ks) in ((3, 12), (4, 9)):
                    assert not fill
                a.wait_lg0()
                a("s_barrier")
            if ps == 2 and 2 <= ks < 18:
                pre += [lambda j=j: hread(j >> 2, j & 3) for j in range(2 * (ks - 2), 2 * (ks - 2) + 2)]
            elif ps == 3 and 6 <= ks < 16:
                pre += [lambda mt=mt: hread(ks + 2, mt) for mt in range(4)]
            elif ps == 4 and ks == 9:
                def xrd(i):
                    r = acc(3, 2, i)
                    xr[i] = a.ds(f"ds_read_b128 v[{r}:{r+3}], v{VPA} offset:{i*1024}")
                pre += [lambda i=i: xrd(i) for i in range(2)]
            elif ps == 4 and ks in (11, 12):
                def xst(i):
                    r = acc(3, 2, i)
                    a.wait(lg=xr[i])
                    a(f"s_mov_b32 s20, {i*18432}")
                    a.vmem(f"buffer_store_dwordx4 v[{r}:{r+3}], v{VPC}, s[16:19], s20 offen {PSC}")
                pre += [lambda: xst(ks - 11)]
            i = 0
            for t in range(W):
                for mt in range(4):
                    d = acc(ps, t, mt)
                    c = "0" if ks == 0 else f"v[{d}:{d+3}]"
                    a(f"v_mfma_f32_16x16x32_bf16 v[{d}:{d+3}], {ring.reg(i0+t)}, {breg(ks,mt)}, {c}")
                    i += 1
                    if pre:
                        pre.pop(0)()
                    if not (ks == 0 and i < 3):
                        target = total * (ks * 4 * W + i + 1) / (fsteps * 4 * W)
                        while fill and spent < target:
                            f = fill.pop(0)
                            spent += cost(f)
                            emit(f)
                ring.load(i0 + t + NS)
            assert not pre
        assert not fill, (ps, len(fill))
        if ps == 2:
            pstamp(a, 11)
    last = None
    for f in store_fill(5):
        r = emit(f)
        last = r or last
    return last


def phase_r_setup(a):
    a(f"s_mul_i32 s21, s7, 73728\ns_add_u32 s22, s21, {OFF_XA}")
    srd(a, 12, "s4", "s5", "s22", 73728)
    a(f"s_add_u32 s22, s21, {OFF_PART}")
    srd(a, 16, "s4", "s5", "s22", 7 * XF_BYTES + 73728)
    a(f"s_add_u32 s22, s4, {OFF_XA}\ns_addc_u32 s23, s5, 0")
    a("s_cmp_eq_u32 s44, 0\ns_cselect_b32 s22, s22, s46\ns_cselect_b32 s23, s23, s47\ns_cselect_b32 s27, 1024, 64\ns_cselect_b64 vcc, -1, 0")
    srd(a, 28, "s22", "s23", "s21", 73728)
    a("s_mul_i32 s20, s3, 9\ns_lshl_b32 s22, s6, 1\ns_add_u32 s22, s22, s20\ns_lshl_b32 s22, s22, 10\nv_add_u32 v5, s22, v2")
    a("s_add_u32 s22, s20, 8\ns_lshl_b32 s22, s22, 10\ns_lshl_b32 s23, s6, 8\ns_add_u32 s22, s22, s23\nv_lshl_add_u32 v6, v1, 2, s22")
    a("s_lshr_b32 s22, s3, 1\ns_mul_i32 s22, s22, 18432\ns_and_b32 s23, s3, 1\ns_mul_i32 s23, s23, 576\ns_add_u32 s22, s22, s23")
    a("v_and_b32 v7, 15, v1\nv_mul_u32_u24 v7, 1152, v7\nv_lshrrev_b32 v8, 4, v1\nv_lshl_add_u32 v7, v8, 4, v7")
    a("s_lshl_b32 s23, s6, 7\ns_add_u32 s23, s23, s22\nv_add_u32 v7, s23, v7")
    a("v_lshrrev_b32 v8, 2, v1\nv_mul_u32_u24 v8, 1152, v8\nv_and_b32 v9, 3, v1\nv_lshl_add_u32 v8, v9, 2, v8")
    a("s_lshl_b32 s23, s6, 4\ns_add_u32 s23, s23, s22\ns_add_u32 s23, s23, 512\nv_add_u32 v8, s23, v8")
    a("v_cndmask_b32 v7, v7, v5, vcc\nv_cndmask_b32 v8, v8, v6, vcc")


def phase_r(a):
    LD, S, T = 12, 104, 122
    tk = []
    for f in range(9):
        b = LD + 10 * f
        if f == 0:
            d, so = "s[12:15]", "0"
        else:
            d, so = "s[16:19]", "s20"
            a(f"s_mov_b32 s20, {(f-1)*XF_BYTES}")
        a.vmem(f"buffer_load_dwordx4 v[{b}:{b+3}], v5, {d}, {so} offen sc1")
        a.vmem(f"buffer_load_dwordx4 v[{b+4}:{b+7}], v5, {d}, {so} offen offset:1024 sc1")
        tk.append(a.vmem(f"buffer_load_dword v{b+8}, v6, {d}, {so} offen sc1"))
    for f in range(9):
        a.wait(vm=tk[f])
        b = LD + 10 * f
        o = S if f == 0 else T
        for j in range(9):
            a(f"v_lshlrev_b32 v{o+2*j}, 16, v{b+j}\nv_and_b32 v{o+2*j+1}, 0xffff0000, v{b+j}")
        if f:
            for j in range(9):
                a(f"v_pk_add_f32 v[{S+2*j}:{S+2*j+1}], v[{S+2*j}:{S+2*j+1}], v[{T+2*j}:{T+2*j+1}]")
    for j in range(9):
        a(f"v_cvt_pk_bf16_f32 v{S+j}, v{S+2*j}, v{S+2*j+1}")
    a.vmem(f"buffer_store_dwordx4 v[{S}:{S+3}], v7, s[28:31], 0 offen")
    a.vmem(f"buffer_store_dwordx4 v[{S+4}:{S+7}], v7, s[28:31], s27 offen")
    return a.vmem(f"buffer_store_dword v{S+8}, v8, s[28:31], 0 offen")


def x_gather(a):
    a("v_lshrrev_b32 v126, 3, v1\nv_and_b32 v127, 7, v1\nv_xor_b32 v127, v127, v126\nv_mul_u32_u24 v126, 1152, v126\nv_lshl_add_u32 v126, v127, 4, v126")
    a("v_add_u32 v127, 9216, v126")
    a("s_mul_i32 s20, s6, 18432\ns_mov_b32 s21, s20")
    for i in range(18):
        a("s_mov_b32 m0, s20\ns_add_u32 s20, s20, 1024")
        a(f"buffer_load_dwordx4 v{126+(i&1)}, s[48:51], s21 offen lds")
        if i & 1:
            a("s_add_u32 s21, s21, 128")


def first_touch(a):
    uid[0] += 1
    u = uid[0]
    srd(a, 8, "s26", "s27", 0, 576 * 1728 * 2)
    a("s_mul_i32 s20, s7, 73728")
    srd(a, 48, "s24", "s25", "s20", 73728)
    a(f"s_cmp_ge_u32 s6, 2\ns_cbranch_scc1 L_ftx{u}")
    a("s_lshl_b32 s20, s6, 6\nv_add_u32 v126, s20, v1\nv_min_u32 v126, 89, v126")
    a("v_mul_u32_u24 v127, 205, v126\nv_lshrrev_b32 v127, 10, v127")
    a("v_mul_u32_u24 v125, 5, v127\nv_sub_u32 v126, v126, v125\nv_lshlrev_b32 v126, 7, v126\nv_min_u32 v126, 428, v126")
    a("v_mul_u32_u24 v127, 3456, v127\nv_add_u32 v126, v126, v127")
    a(f"s_and_b32 s20, s2, 7\ns_mul_i32 s20, s20, 432\ns_lshr_b32 s21, s2, 3\ns_mul_i32 s21, s21, {18*3456}\ns_add_u32 s20, s20, s21")
    a("buffer_load_dword v125, v126, s[8:11], s20 offen")
    a(f"s_branch L_ftd{u}")
    a(f"L_ftx{u}:")
    a("v_min_u32 v126, 35, v1\nv_lshlrev_b32 v126, 7, v126")
    a("s_lshl_b32 s20, s3, 1\ns_add_u32 s20, s20, s6\ns_sub_u32 s20, s20, 2\ns_mul_i32 s20, s20, 4608")
    a("buffer_load_dword v125, v126, s[48:51], s20 offen")
    a(f"L_ftd{u}:")


def phase_k(a):
    a("s_load_dwordx4 s[24:27], s[0:1], 0")
    a("s_load_dwordx2 s[28:29], s[0:1], 16")
    a("s_load_dwordx4 s[32:35], s[0:1], 32")
    a("s_cmp_ge_u32 s2, 177\ns_cbranch_scc1 L_k0_misc")
    a("s_getpc_b64 s[20:21]\nL_k0_pc:")
    a("s_add_u32 s20, s20, L_k0_tab-L_k0_pc\ns_addc_u32 s21, s21, 0")
    a("s_lshl_b32 s22, s2, 2\ns_add_u32 s22, s22, s6\ns_lshl_b32 s22, s22, 4")
    a("s_load_dwordx4 s[16:19], s[20:21], s22")
    a("v_lshrrev_b32 v3, 4, v1")
    a("v_bfe_u32 v4, v1, 2, 2")
    a("v_and_b32 v5, 3, v1")
    LV = 16
    a("s_cmp_lt_u32 s2, 24\ns_cbranch_scc1 L_k0_qkv")
    a("v_lshrrev_b32 v6, 3, v1\nv_and_b32 v7, 7, v1\nv_and_b32 v8, 2, v6")
    a("s_cmp_lt_u32 s2, 96\ns_cselect_b32 s22, 0, 1\ns_cselect_b32 s23, 64, 0")
    a("v_lshlrev_b32 v8, s22, v8\nv_xor_b32 v7, v7, v8\nv_lshlrev_b32 v7, 4, v7")
    a(f"s_mul_i32 s36, s6, 18432\ns_add_u32 s36, s36, {HB}")
    a("s_waitcnt lgkmcnt(0)")
    stamp(a, 0)
    first_touch(a)
    if FTWAIT:
        a("s_waitcnt vmcnt(0)")
    a("s_cmp_lt_u32 s2, 96\ns_cselect_b32 s20, s32, s34\ns_cselect_b32 s21, s33, s35")
    a(f"s_cmp_lt_u32 s2, 168\ns_cselect_b32 s20, s20, s28\ns_cselect_b32 s21, s21, s29\ns_mov_b32 s37, {576*4608*2}\ns_cselect_b32 s10, s37, {576*576*2}")
    a("s_mov_b32 s8, s20\ns_and_b32 s9, s21, 0xffff\ns_mov_b32 s11, 0x20000")
    a("v_mul_lo_u32 v6, v6, s19\nv_add_u32 v6, v6, v7\nv_xor_b32 v7, s23, v6")
    a("s_mul_i32 s37, s6, 144\ns_mul_i32 s37, s37, s19\ns_add_u32 s37, s37, s18\ns_lshl_b32 s38, s19, 3")
    for i in range(18):
        a("s_mov_b32 m0, s36\ns_add_u32 s36, s36, 1024")
        a(f"buffer_load_dwordx4 v{6+(i&1)}, s[8:11], s37 offen {K0_NT} lds")
        a("s_add_u32 s37, s37, s38")
    x_gather(a)
    srd(a, 12, "s4", "s5", "s16", 18 * 4096)
    a("s_cmp_ge_u32 s2, 96\ns_cbranch_scc1 L_k0_bc")

    def trread(addr):
        tk = []
        for ks in range(18):
            for half in range(2):
                v, off = addr(ks, half)
                r = LV + 4 * ks + 2 * half
                t = a.ds(f"ds_read_b64_tr_b16 v[{r}:{r+1}], v{v} offset:{off}")
            tk.append(t)
        return tk

    def split(off, lim, v0, v1):
        return (v0, off) if off < lim else (v1, off - lim)

    def colsum(tk, regs, d):
        for j in range(4):
            a(f"v_mov_b32 v{12+j}, 0x3f803f80")
        for n, r in enumerate(regs):
            a.wait(lg=tk[n])
            c = "0" if n == 0 else f"v[{d}:{d+3}]"
            a(f"v_mfma_f32_16x16x32_bf16 v[{d}:{d+3}], v[12:15], v[{r}:{r+3}], {c}")

    def centre(r, m, t):
        for j in range(4):
            a(f"v_lshlrev_b32 v{t+2*j}, 16, v{r+j}\nv_and_b32 v{t+2*j+1}, 0xffff0000, v{r+j}")
        for j in range(4):
            a(f"v_pk_add_f32 v[{t+2*j}:{t+2*j+1}], v[{t+2*j}:{t+2*j+1}], v[{m}:{m+1}] op_sel_hi:[1,0]")
        for j in range(4):
            a(f"v_cvt_pk_bf16_f32 v{r+j}, v{t+2*j}, v{t+2*j+1}")

    def store_all(tk, centred):
        a("s_mov_b32 s20, 0")
        for ks in range(18):
            r = LV + 4 * ks
            if centred:
                centre(r, 88, 92 + 8 * (ks & 1))
            else:
                a.wait(lg=tk[ks])
            a(f"buffer_store_dwordx4 v[{r}:{r+3}], v2, s[12:15], s20 offen {K0_SC}")
            a("s_add_u32 s20, s20, s17")
    NEG576 = INV576 | 0x80000000
    a("v_lshl_add_u32 v8, v3, 3, v4\nv_lshlrev_b32 v8, 7, v8")
    a("v_lshrrev_b32 v9, 1, v5\ns_lshl_b32 s20, s6, 1\nv_add_u32 v9, s20, v9")
    a("v_and_b32 v10, 2, v4\nv_xor_b32 v9, v9, v10\nv_and_b32 v10, 1, v3\nv_lshlrev_b32 v10, 2, v10\nv_xor_b32 v9, v9, v10")
    a("v_lshl_add_u32 v8, v9, 4, v8\nv_and_b32 v10, 1, v5\nv_lshl_add_u32 v8, v10, 3, v8")
    a(f"v_add_u32 v8, {HB}, v8\nv_add_u32 v9, 36864, v8")
    stamp(a, 1)
    a("s_waitcnt vmcnt(18)\ns_barrier")
    stamp(a, 2)
    tk = trread(lambda ks, half: split((32 * ks + 4 * half) * 128, 36864, 8, 9))
    a("L_k0_ctail:")
    colsum(tk, [LV + 4 * ks for ks in range(18)], 88)
    a(f"v_mul_f32 v88, {NEG576}, v88")
    store_all(tk, True)
    a("s_branch L_k0_done")
    a("L_k0_bc:")
    a.lg = a.lg_done = 0
    a("s_lshr_b32 s20, s6, 1\ns_lshl_b32 s20, s20, 2\nv_add_u32 v11, s20, v5")
    a(f"s_and_b32 s21, s6, 1\ns_lshl_b32 s21, s21, 3\ns_add_u32 s21, s21, {HB}")
    a("v_lshl_add_u32 v8, v3, 2, v4\nv_lshlrev_b32 v8, 7, v8")
    a("v_and_b32 v10, 2, v4\nv_lshlrev_b32 v10, 1, v10\nv_xor_b32 v9, v11, v10")
    a("v_lshl_add_u32 v8, v9, 4, v8\nv_add_u32 v8, s21, v8\nv_add_u32 v9, 36864, v8")
    a("s_cmp_ge_u32 s2, 168\ns_cbranch_scc1 L_k0_wo")
    stamp(a, 1)
    a("s_waitcnt vmcnt(18)\ns_barrier")
    stamp(a, 2)
    tk = trread(lambda ks, half: split(w2_frow(ks, half) * 128, 36864, 8, 9))
    a("L_k0_ptail:")
    store_all(tk, False)
    a("s_branch L_k0_done")
    a("L_k0_wo:")
    a.lg = a.lg_done = 0
    a("v_lshrrev_b32 v10, 1, v4\nv_mul_u32_u24 v10, 72, v10\nv_mul_u32_u24 v12, 18, v3\nv_add_u32 v10, v10, v12")
    a("v_and_b32 v12, 1, v3\nv_xor_b32 v12, 1, v12\nv_lshl_add_u32 v10, v12, 4, v10\nv_and_b32 v12, 1, v4\nv_add_u32 v10, v10, v12")
    a("v_and_b32 v12, 2, v10\nv_lshlrev_b32 v12, 1, v12\nv_xor_b32 v12, v11, v12")
    a("v_lshlrev_b32 v10, 7, v10\nv_lshl_add_u32 v10, v12, 4, v10\nv_add_u32 v10, s21, v10")
    stamp(a, 1)
    a("s_waitcnt vmcnt(18)\ns_barrier")
    stamp(a, 2)
    trread(lambda ks, half: split((36 * ks + 20 * half) * 128, 36864, 8, 9) if ks < 16 else (10, (288 * (ks - 16) + 144 * half) * 128))
    a("s_branch L_k0_ptail")
    a("L_k0_qkv:")
    a.lg = a.lg_done = 0
    a("s_mov_b32 s22, 7282")
    for j in range(3):
        if j < 2:
            a(f"s_add_u32 s20, s6, {4*j}\ns_lshl_b32 s20, s20, 6\nv_add_u32 v9, s20, v1")
        else:
            a("v_add_u32 v9, 512, v1")
        a(f"v_mul_lo_u32 v10, v9, s22\nv_lshrrev_b32 v10, 16, v10\nv_mul_u32_u24 v11, 9, v10\nv_sub_u32 v9, v9, v11")
        a(f"v_mul_u32_u24 v10, 3456, v10\nv_lshl_add_u32 v{6+j}, v9, 4, v10")
    a("s_waitcnt lgkmcnt(0)")
    stamp(a, 0)
    first_touch(a)
    a(f"s_lshl_b32 s36, s6, 10\ns_add_u32 s36, s36, {HB}\ns_mov_b32 s37, s18")
    for blk in range(9):
        for j in range(2):
            a(f"s_add_u32 m0, s36, {blk*9216+j*4096}\ns_nop 0")
            a(f"buffer_load_dwordx4 v{6+j}, s[8:11], s37 offen lds")
        a(f"s_add_u32 s37, s37, {64*3456}")
    a(f"s_mul_i32 s36, s6, 9216\ns_add_u32 s36, s36, {HB}\ns_mul_i32 s37, s6, {64*3456}\ns_add_u32 s37, s37, s18")
    for j in range(3):
        if j == 2:
            a("s_cmp_lg_u32 s6, 0\ns_cbranch_scc1 L_k0_q1")
        a(f"s_add_u32 m0, s36, {j*4*9216+8192}\ns_nop 0")
        a("buffer_load_dwordx4 v8, s[8:11], s37 offen lds")
        a(f"s_add_u32 s37, s37, {4*64*3456}")
    a("L_k0_q1:")
    x_gather(a)
    srd(a, 12, "s4", "s5", "s16", 18 * 4096)
    srd(a, 40, "s4", "s5", "s19", 2304)
    a("v_lshl_add_u32 v10, v3, 3, v4\nv_mul_u32_u24 v10, 144, v10")
    a("s_mul_i32 s20, s6, 36\ns_and_b32 s21, s6, 1\ns_lshl_b32 s22, s21, 2\ns_add_u32 s20, s20, s22")
    a(f"s_add_u32 s20, s20, {HB}")
    a("v_lshl_add_u32 v8, v5, 3, v10\nv_add_u32 v8, s20, v8\nv_add_u32 v9, 41472, v8")
    a(f"s_lshr_b32 s20, s6, 1\ns_mul_i32 s20, s20, 72\ns_add_u32 s20, s20, {HB+32}\nv_mul_u32_u24 v11, {32*144}, v5")
    a("v_add3_u32 v10, v10, v11, s20")
    a(f"v_and_b32 v11, 1, v5\nv_mul_u32_u24 v11, {32*144}, v11\nv_lshl_add_u32 v7, v3, 3, v4\nv_mul_u32_u24 v7, 144, v7\nv_add3_u32 v11, v7, v11, s20")
    a(f"v_add_u32 v11, {4*128*144}, v11")
    a("v_and_b32 v6, 1, v5\nv_lshl_add_u32 v6, v3, 1, v6\nv_lshlrev_b32 v6, 4, v6\nv_lshl_add_u32 v6, v4, 7, v6")
    a("s_lshl_b32 s21, s21, 1\ns_mov_b32 s44, 0x33333333\ns_lshl_b32 s44, s44, s21\ns_mov_b32 s45, s44")
    a("s_mov_b32 s46, 0x00ff00ff\ns_mov_b32 s47, 0x00ff00ff")
    stamp(a, 1)
    a("s_waitcnt vmcnt(18)\ns_barrier")
    stamp(a, 2)
    RV = 128
    rt = []
    for q in range(5):
        for half in range(2):
            r = RV + 4 * q + 2 * half
            v, off = (10, (q * 128 + 4 * half) * 144) if q < 4 else (11, 4 * half * 144)
            t = a.ds(f"ds_read_b64_tr_b16 v[{r}:{r+1}], v{v} offset:{off}")
        rt.append(t)
    a.wait(lg=rt[4])
    for j in range(4):
        a(f"v_cndmask_b32 v{RV+16+j}, 0, v{RV+16+j}, s[46:47]")
    colsum(rt, [RV + 4 * q for q in range(5)], 88)
    a.lg = a.lg_done = 0
    trread(lambda ks, half: split((32 * ks + 4 * half) * 144, 41472, 8, 9))
    a("v_add_f32_dpp v88, v88, v88 row_ror:4 row_mask:0xf bank_mask:0xf")
    a("v_add_f32_dpp v88, v88, v88 row_ror:8 row_mask:0xf bank_mask:0xf")
    a(f"v_mul_f32 v88, {NEG576}, v88")
    for q in range(5):
        centre(RV + 4 * q, 88, 92 + 8 * (q & 1))
    a("s_mov_b64 exec, s[44:45]")
    for q in range(5):
        a(f"buffer_store_dwordx4 v[{RV+4*q}:{RV+4*q+3}], v6, s[40:43], 0 offen offset:{q*512} sc1")
    a("s_mov_b64 exec, -1")
    a("s_branch L_k0_ctail")
    a("L_k0_misc:")
    a("s_waitcnt lgkmcnt(0)")
    stamp(a, 0)
    first_touch(a)
    a("s_cmp_ge_u32 s2, 182\ns_cbranch_scc1 L_k0_m2")
    a(f"s_sub_u32 s20, s2, 177\ns_lshl_b32 s20, s20, 15\ns_add_u32 s20, s20, {OFF_Z}")
    srd(a, 12, "s4", "s5", "s20", 32768)
    a("v_lshlrev_b32 v5, 4, v0")
    for j in range(4):
        a(f"v_mov_b32 v{8+j}, 0")
    for j in range(8):
        a(f"s_mov_b32 s20, {4096*j}")
        a(f"buffer_store_dwordx4 v[8:11], v5, s[12:15], s20 offen sc1")
    srd(a, 12, "s30", "s31", 0, 256)
    a("s_waitcnt vmcnt(0)\ns_barrier")
    a("s_cmp_lg_u32 s6, 0\ns_cbranch_scc1 L_k0_m2")
    a("s_sub_u32 s20, s2, 177\ns_lshl_b32 s20, s20, 2\nv_mov_b32 v3, 1\ns_mov_b64 exec, 1")
    a("buffer_store_dword v3, off, s[12:15], s20 sc1")
    a("s_mov_b64 exec, -1")
    a("L_k0_m2:")
    if HELP:
        a("s_cmp_lt_u32 s2, 184\ns_cbranch_scc1 L_k0_m3")
        srd(a, 12, "s32", "s33", 0, 576 * 4608 * 2)
        a(f"s_sub_u32 s20, s2, 184\ns_lshl_b32 s20, s20, 7\ns_mul_i32 s21, s6, {144*9216}\ns_add_u32 s20, s20, s21\ns_add_u32 s20, s20, {80*9216}")
        a("v_mul_u32_u24 v3, 9216, v1")
        a("buffer_load_dword v4, v3, s[12:15], s20 offen")
        a("L_k0_m3:")
    x_gather(a)
    a("L_k0_done:")
    stamp(a, 3)
    srd(a, 8, "s30", "s31", 0, 256)
    srd(a, 56, "s4", "s5", OFF_Z, Z_BYTES)
    a("s_cmp_lg_u32 s6, 3\ns_cbranch_scc1 L_k0_zsd")
    a("v_min_u32 v3, 4, v1\nv_lshlrev_b32 v3, 2, v3")
    a(f"s_mov_b32 s21, {SPIN_MAX}")
    a("L_k0_zs:")
    a("buffer_load_dword v4, v3, s[8:11], 0 offen sc1")
    a("s_waitcnt vmcnt(0)")
    a("v_cmp_ne_u32 vcc, 0, v4")
    a("s_sub_u32 s21, s21, 1\ns_nop 0")
    a("s_cmp_eq_u64 vcc, exec\ns_cbranch_scc1 L_k0_zsd")
    a("s_sleep 8")
    a("s_cmp_lg_u32 s21, 0\ns_cbranch_scc1 L_k0_zs")
    a("L_k0_zsd:")
    a("s_waitcnt vmcnt(0)\ns_barrier")
    a("s_sub_u32 s20, s2, 144\ns_cmp_lt_u32 s2, 24\ns_cselect_b32 s20, s2, s20\ns_cselect_b32 s21, 0, 24")
    a("s_cmp_lt_u32 s20, s21\ns_cbranch_scc1 L_k0_nosig\ns_cmp_ge_u32 s20, 33\ns_cbranch_scc1 L_k0_nosig\ns_cmp_lg_u32 s6, 0\ns_cbranch_scc1 L_k0_nosig")
    a(f"s_lshl_b32 s20, s20, 7\ns_add_u32 s20, s20, {Z_B0}\nv_mov_b32 v3, 1\ns_mov_b64 exec, 1")
    a("buffer_store_dword v3, off, s[56:59], s20 sc1")
    a("s_mov_b64 exec, -1")
    a("L_k0_nosig:")
    a("v_and_b32 v3, 15, v1\nv_lshrrev_b32 v4, 4, v1\nv_and_b32 v5, 7, v1\nv_xor_b32 v4, v4, v5\nv_lshlrev_b32 v4, 4, v4")
    a("v_lshl_add_u32 v249, v3, 7, v4\nv_xor_b32 v250, 64, v249")
    a(f"s_mul_i32 s20, s7, 73728\ns_add_u32 s20, s20, {OFF_XA}")
    srd(a, 12, "s4", "s5", "s20", 73728)
    a("s_mul_i32 s20, s3, 9\ns_add_u32 s20, s20, s6\ns_and_b32 s21, s20, 1\ns_cmp_eq_u32 s21, 0\ns_cselect_b64 vcc, -1, 0")
    a("s_sub_u32 s21, s20, s21\ns_lshl_b32 s21, s21, 10\ns_lshl_b32 s20, s20, 10")
    a("v_cndmask_b32 v5, v250, v249, vcc\nv_add_u32 v5, s21, v5")
    a("ds_read_b128 v[12:15], v5\nds_read_b128 v[16:19], v5 offset:4096\nds_read_b128 v[20:23], v5 offset:8192")
    a("s_add_u32 s21, s20, 4096\ns_add_u32 s22, s20, 8192\ns_cmp_eq_u32 s6, 0\ns_cselect_b32 s22, s22, 0x40000000")
    a("s_waitcnt lgkmcnt(0)")
    a("buffer_store_dwordx4 v[12:15], v2, s[12:15], s20 offen sc1")
    a("buffer_store_dwordx4 v[16:19], v2, s[12:15], s21 offen sc1")
    a("buffer_store_dwordx4 v[20:23], v2, s[12:15], s22 offen sc1")
    q_lane_setup(a)
    a("s_cmp_lg_u32 s6, 3\ns_cbranch_scc1 L_k0_god")
    a(f"v_min_u32 v3, 32, v1\nv_lshlrev_b32 v3, 7, v3\ns_mov_b32 s20, {Z_B0}")
    a(f"s_mov_b32 s21, {SPIN_MAX}")
    a("L_k0_go:")
    a("buffer_load_dword v4, v3, s[56:59], s20 offen sc1")
    a("s_waitcnt vmcnt(0)")
    a("v_cmp_ne_u32 vcc, 0, v4")
    a("s_sub_u32 s21, s21, 1\ns_nop 0")
    a("s_cmp_eq_u64 vcc, exec\ns_cbranch_scc1 L_k0_god")
    a("s_sleep 4")
    a("s_cmp_lg_u32 s21, 0\ns_cbranch_scc1 L_k0_go")
    a("L_k0_god:")
    a("s_barrier")
    a.lg = a.lg_done = 0
    stamp(a, 4)


def save_stamps(a):
    if not STAMP:
        return
    a("s_waitcnt lgkmcnt(0)")
    a("s_lshl_b32 s20, s44, 4")
    for i in range(15):
        a(f"s_add_u32 m0, s20, {i}\ns_nop 0\nv_writelane_b32 v255, s{60+2*i}, m0")


def kp():
    a = Asm()
    name = NAME
    a(f".globl {name}\n.p2align 8\n.type {name},@function\n{name}:")
    a(f"s_cmp_ge_u32 s2, 256\ns_cbranch_scc1 L_{name}_end")
    if STAMP:
        a(f"{STAMPOP} s[92:93]\nv_mov_b32 v255, 0")
        for i in range(30):
            a(f"s_mov_b32 s{60+i}, 0")
    a("s_load_dwordx2 s[4:5], s[0:1], 64")
    a("s_load_dwordx2 s[30:31], s[0:1], 56")
    a("v_lshrrev_b32 v1, 6, v0")
    a("v_readfirstlane_b32 s6, v1")
    a("v_and_b32 v1, 63, v0")
    a("v_lshlrev_b32 v2, 4, v1")
    a("s_getpc_b64 s[20:21]\nL_pc0:")
    a("s_lshr_b32 s22, s2, 3\ns_lshl_b32 s22, s22, 2\ns_add_u32 s22, s22, s6\ns_lshl_b32 s22, s22, 7")
    a(f"v_and_b32 v3, 3, v1\nv_lshlrev_b32 v3, 14, v3\nv_add_u32 v3, s22, v3\nv_min_u32 v3, L_{NAME}_end-L_pc0, v3")
    a("global_load_dword v124, v3, s[20:21]")
    a("s_and_b32 s7, s2, 7\ns_lshl_b32 s7, s7, 2\ns_lshr_b32 s3, s2, 3\ns_and_b32 s20, s3, 3\ns_add_u32 s7, s7, s20\ns_lshr_b32 s3, s3, 2")
    phase_k(a)
    ring = QRing(a, 72)
    q_ring_setup(a, ring)
    if STAMP:
        a("s_waitcnt lgkmcnt(0)")
        for i in range(5):
            a(f"v_writelane_b32 v255, s{60+2*i}, {40+i}")
    a("s_load_dwordx2 s[46:47], s[0:1], 48")
    a("s_lshl_b32 s53, s7, 1\ns_and_b32 s20, s3, 1\ns_add_u32 s53, s53, s20\ns_lshr_b32 s54, s3, 1")
    a(f"s_lshl_b32 s51, s7, 7\ns_add_u32 s51, s51, {Z_CF}")
    a("s_lshl_b32 s52, s3, 2\ns_add_u32 s52, s52, s6\ns_lshl_b32 s52, s52, 2\ns_add_u32 s52, s52, s51")
    a("s_mov_b32 s44, 0\ns_mov_b32 s45, 0")
    a("s_getreg_b32 s20, hwreg(HW_REG_XCC_ID, 0, 4)\ns_lshl_b32 s20, 1, s20\nv_mov_b32 v3, s20")
    a(f"s_add_u32 s48, s4, {OFF_L}\ns_addc_u32 s49, s5, 0")
    a(f"s_and_b32 s20, s2, 7\ns_lshl_b32 s20, s20, 7\ns_add_u32 s20, s20, {Z_XM}")
    a("s_cmp_eq_u32 s6, 0\ns_cselect_b32 s20, s20, 0x40000000")
    a("s_mov_b64 exec, 1")
    a.vmem("buffer_atomic_or v3, off, s[56:59], s20")
    a("s_mov_b64 exec, -1")
    a("s_waitcnt lgkmcnt(0)")
    a("L_layer:")
    last = phase_q(a, ring)
    o_prefetch(a, 0)
    phase_o_setup(a)
    grid_barrier(a, last)
    pstamp(a, 5)
    ring = Ring(a, 324)
    last = phase_o(a, ring)
    pstamp(a, 8)
    cluster_signal(a, 0, last)
    cluster_wait(a, "s51")
    pstamp(a, 9)
    last = phase_f(a, ring)
    pstamp(a, 12)
    ring = QRing(a, 72)
    q_lane_setup(a)
    q_ring_setup(a, ring)
    phase_r_setup(a)
    cluster_signal(a, 1, last)
    a("s_add_u32 s22, s51, 4096")
    cluster_wait(a, "s22")
    pstamp(a, 13)
    last = phase_r(a)
    pstamp(a, 14)
    a(f"s_cmp_eq_u32 s44, 1\ns_cbranch_scc1 L_{name}_fin")
    cluster_signal(a, 2, last)
    save_stamps(a)
    a(f"s_mul_i32 s22, s7, 73728\ns_add_u32 s22, s22, {OFF_XA}")
    srd(a, 12, "s4", "s5", "s22", 73728)
    a("s_add_u32 s22, s51, 8192")
    cluster_wait(a, "s22")
    dma_x_tile(a, 12)
    a(f"s_mov_b32 s44, 1\ns_add_u32 s48, s48, {L_STRIDE}\ns_addc_u32 s49, s49, 0")
    a("s_add_u32 s51, s51, 16384\ns_add_u32 s52, s52, 16384")
    a("s_branch L_layer")
    a(f"L_{name}_fin:")
    if STAMP:
        save_stamps(a)
        a("s_waitcnt vmcnt(0)")
        a(f"{STAMPOP} s[94:95]\ns_waitcnt lgkmcnt(0)")
        a("v_writelane_b32 v255, s92, 32\nv_writelane_b32 v255, s94, 33\nv_writelane_b32 v255, s45, 34")
        a(f"s_lshl_b32 s20, s2, 2\ns_add_u32 s20, s20, s6\ns_lshl_b32 s20, s20, 8\ns_add_u32 s20, s20, {OFF_STAMP+0x400000}")
        a("s_add_u32 s20, s4, s20\ns_addc_u32 s21, s5, 0\nv_lshlrev_b32 v3, 2, v1")
        a("global_store_dword v3, v255, s[20:21]")
        if DBGOUT:
            a(f"s_cmp_lg_u32 s2, 100\ns_cbranch_scc1 L_{name}_end\ns_cmp_lg_u32 s6, 0\ns_cbranch_scc1 L_{name}_end")
            a("s_load_dwordx2 s[20:21], s[0:1], 56\nv_mov_b32 v3, 0\ns_waitcnt lgkmcnt(0)")
            for j, ln in enumerate((40, 42, 44, 4, 5, 10, 12, 14, 21, 28, 33)):
                a(f"v_readlane_b32 s22, v255, {ln}\ns_nop 3\ns_sub_u32 s22, s22, s92\nv_mov_b32 v4, s22\nglobal_store_dword v3, v4, s[20:21] offset:{20+4*j}\ns_nop 1")
    a(f"L_{name}_end:\ns_endpgm")
    a(".p2align 4\n.type L_k0_tab,@object\nL_k0_tab:")
    for e in k0_table():
        a(".long " + ", ".join(str(x) for x in e))
    a(".size L_k0_tab, .-L_k0_tab")
    return name, a, dict(nv=512, acc=256, ns=102), (256, 256, STAT + 512)


HEADER = """; interleave_layers: 2 x (LN -> linear attention -> residual, LN -> SiLU FFN -> residual), S=2048 D=576 F=4608 H=32
"""


def build(delay=False):
    ks = {}
    for f in (kp,):
        name, a, kd, geo = f()
        ks[name] = (a, kd, geo)
    order = [NAME]
    s = HEADER
    if delay:
        s += "; @launch kernel=delay_kernel grid=(256,1,1) block=(64,1,1) lds=0\n"
    for n in order:
        g, b, l = ks[n][2]
        s += f"; @launch {'kernel=' + n + ' ' if LIST else ''}grid=({g},1,1) block=({b},1,1) lds={l}\n"
    s += '.amdgcn_target "amdgcn-amd-amdhsa--gfx950"\n.text\n'
    kd = '.section .rodata,"a"\n'
    if delay:
        s += ".globl delay_kernel\n.p2align 8\n.type delay_kernel,@function\ndelay_kernel:\ns_mov_b32 s4, 3000\nL_dl:\ns_sleep 4\ns_sub_u32 s4, s4, 1\ns_cmp_lg_u32 s4, 0\ns_cbranch_scc1 L_dl\ns_endpgm\n"
        kd += KD.format(name="delay_kernel", nv=8, acc=8, ns=16)
    for n, (a, d, geo) in ks.items():
        s += a.text()
        kd += KD.format(name=n, **d)
        sys.stderr.write(f"{n}: {len(a.lines)} lines, {a.nops} nops inserted\n")
    return s + kd


if __name__ == "__main__":
    out = sys.argv[1]
    opts = sys.argv[2:]
    if "stamp" in opts or "stampc" in opts:
        STAMP = True
    if "stampc" in opts:
        STAMPOP = "s_memtime"
    if "k0nont" in opts:
        K0_NT = ""
    if "k0plain" in opts:
        K0_SC = ""
    if "help" in opts:
        HELP = True
    if "ftwait" in opts:
        FTWAIT = True
    if "slow" in opts:
        FORCE_SLOW = True
    if "dbgout" in opts:
        DBGOUT = STAMP = True
    LIST = (STAMP and not DBGOUT) or "list" in opts
    open(out, "w").write(build(delay=STAMP and not DBGOUT))
```

```python
from gen_stream2 import KD, delay_kernel
def warm(name, idx, region, mb):
    n = mb*1024*1024 // (256*256*16)
    L = [f".globl {name}\n.p2align 8\n.type {name},@function\n{name}:", f"s_cmp_ge_u32 s2, 256\ns_cbranch_scc1 L_end{idx}",
         "s_load_dwordx2 s[4:5], s[0:1], 64", "v_lshlrev_b32 v2, 4, v0", f"s_mul_i32 s7, s2, {n*4096}\ns_add_u32 s7, s7, {region}", "s_waitcnt lgkmcnt(0)",
         f"s_add_u32 s12, s4, s7\ns_addc_u32 s13, s5, 0\ns_and_b32 s13, s13, 0xffff\ns_mov_b32 s14, {n*4096}\ns_mov_b32 s15, 0x20000", "s_mov_b32 s16, 0",
         f"L_w{idx}:", "buffer_load_dwordx4 v[4:7], v2, s[12:15], s16 offen", f"s_add_u32 s16, s16, 4096\ns_cmp_lt_u32 s16, {n*4096}\ns_cbranch_scc1 L_w{idx}", "s_waitcnt vmcnt(0)", f"L_end{idx}:\ns_endpgm"]
    return "\n".join(L), KD.format(name=name, nv=16, acc=16)
def lat(name, idx, stride, n=512):
    L = [f".globl {name}\n.p2align 8\n.type {name},@function\n{name}:", f"s_cmp_ge_u32 s2, 8\ns_cbranch_scc1 L_end{idx}",
         "s_load_dwordx2 s[4:5], s[0:1], 64", "s_waitcnt lgkmcnt(0)",
         f"s_mov_b32 s12, s4\ns_and_b32 s13, s5, 0xffff\ns_mov_b32 s14, 0x10000000\ns_mov_b32 s15, 0x20000", "s_mov_b32 s16, 0",
         f"s_lshl_b32 s17, s2, 12\ns_add_u32 s17, s17, {0x8000000 + idx*0x10000}", "s_mov_b64 exec, 1",
         "s_getreg_b32 s18, hwreg(HW_REG_XCC_ID, 0, 4)\nv_mov_b32 v5, s18\nbuffer_store_dword v5, off, s[12:15], s17 offset:4092",
         f"L_w{idx}:", "s_waitcnt vmcnt(0)\ns_memtime s[20:21]\ns_waitcnt lgkmcnt(0)", "buffer_load_dword v4, off, s[12:15], s16 sc1", "s_waitcnt vmcnt(0)\ns_memtime s[22:23]\ns_waitcnt lgkmcnt(0)",
         "s_sub_u32 s22, s22, s20\nv_mov_b32 v5, s22\nbuffer_store_dword v5, off, s[12:15], s17\ns_add_u32 s17, s17, 4",
         f"s_add_u32 s16, s16, {stride}\ns_cmp_lt_u32 s16, {n*stride}\ns_cbranch_scc1 L_w{idx}", "s_waitcnt vmcnt(0)", f"L_end{idx}:\ns_endpgm"]
    return "\n".join(L), KD.format(name=name, nv=16, acc=16)
ks = [warm("a_kernel", 0, 0, 16), warm("b_kernel", 1, 0x2000000, 64), lat("c_kernel", 2, 256), lat("d_kernel", 3, 4096), lat("e_kernel", 4, 128)]
hdr = ""
for n, b in (("a",256),("b",256),("c",64),("b",256),("d",64),("b",256),("e",64)):
    hdr += f"; @launch kernel={n}_kernel grid=(256,1,1) block=({b},1,1) lds=0\n"
open("lat.s","w").write(hdr + '.amdgcn_target "amdgcn-amd-amdhsa--gfx950"\n.text\n' + "\n".join(k[0] for k in ks) + '\n.section .rodata,"a"\n' + "".join(".p2align 6\n"+k[1] for k in ks))
```

```python
import sys
KD = """.amdhsa_kernel {name}
  .amdhsa_next_free_vgpr {nv}
  .amdhsa_next_free_sgpr 40
  .amdhsa_accum_offset {acc}
  .amdhsa_group_segment_fixed_size 0
  .amdhsa_kernarg_size 72
  .amdhsa_user_sgpr_count 2
  .amdhsa_user_sgpr_kernarg_segment_ptr 1
  .amdhsa_system_sgpr_workgroup_id_x 1
.end_amdhsa_kernel
"""
def delay_kernel():
    return """.globl delay_kernel
.p2align 8
.type delay_kernel,@function
delay_kernel:
s_mov_b32 s4, 3000
L_dl:
s_sleep 4
s_sub_u32 s4, s4, 1
s_cmp_lg_u32 s4, 0
s_cbranch_scc1 L_dl
s_endpgm
"""
def stream_kernel(name, idx, shift, D=6, mfma=True, ds=True, nwaves=4, ksteps=108, P=3, valu=0):
    L = []
    A = L.append
    A(f".globl {name}\n.p2align 8\n.type {name},@function\n{name}:")
    A(f"s_cmp_ge_u32 s2, 256\ns_cbranch_scc1 L_end{idx}")
    A("s_memrealtime s[20:21]")
    A("s_memtime s[22:23]")
    A("s_load_dwordx2 s[4:5], s[0:1], 64")
    A("v_lshrrev_b32 v1, 6, v0")
    A("s_nop 0")
    A("v_readfirstlane_b32 s6, v1")
    A("v_and_b32 v2, 63, v0")
    A("v_lshlrev_b32 v2, 4, v2")
    perwave = ksteps*P*1024
    A(f"s_add_u32 s7, s2, {shift}")
    A("s_and_b32 s7, s7, 7")
    A(f"s_mul_i32 s7, s7, {perwave*nwaves}")
    A(f"s_mul_i32 s8, s6, {perwave}")
    A("s_add_u32 s7, s7, s8")
    A("s_waitcnt lgkmcnt(0)")
    A("s_add_u32 s12, s4, s7\ns_addc_u32 s13, s5, 0\ns_and_b32 s13, s13, 0xffff")
    A(f"s_mov_b32 s14, {perwave}\ns_mov_b32 s15, 0x20000")
    RB = 64
    for i in range(16*P):
        A(f"v_accvgpr_write_b32 a{i}, 0")
    for i in range(16,48):
        A(f"v_mov_b32 v{i}, 0")
    A("s_mov_b32 s16, 0")
    for d in range(D):
        for t in range(P):
            r = RB + (d*P+t)*4
            off = (d*P+t)*1024
            if off >= 4096:
                A(f"s_mov_b32 s17, {off & ~4095}")
                A(f"buffer_load_dwordx4 v[{r}:{r+3}], v2, s[12:15], s17 offen offset:{off & 4095}")
            else:
                A(f"buffer_load_dwordx4 v[{r}:{r+3}], v2, s[12:15], 0 offen offset:{off}")
    A(f"s_mov_b32 s16, {D*P*1024}")
    A(f"s_mov_b32 s18, {ksteps//D}")
    A(f"L_loop{idx}:")
    for d in range(D):
        bsel = 16 + (d&1)*16
        bnext = 16 + ((d+1)&1)*16
        A(f"s_waitcnt vmcnt({(D-1)*P})" + (" lgkmcnt(0)" if ds else ""))
        for t in range(P):
            r = RB + (d*P+t)*4
            for m in range(4):
                if mfma:
                    A(f"v_mfma_f32_16x16x32_bf16 a[{(t*4+m)*4}:{(t*4+m)*4+3}], v[{r}:{r+3}], v[{bsel+m*4}:{bsel+m*4+3}], a[{(t*4+m)*4}:{(t*4+m)*4+3}]")
                if ds and t == 0:
                    A(f"ds_read_b128 v[{bnext+m*4}:{bnext+m*4+3}], v2 offset:{(d*4+m)*1024}")
                for q in range(valu):
                    A(f"v_mul_f32 v{50+q}, v{50+q}, v{50+q}")
            A(f"buffer_load_dwordx4 v[{r}:{r+3}], v2, s[12:15], s16 offen offset:{t*1024}")
        A(f"s_add_u32 s16, s16, {P*1024}")
    A(f"s_sub_u32 s18, s18, 1\ns_cmp_lg_u32 s18, 0\ns_cbranch_scc1 L_loop{idx}")
    A("s_waitcnt vmcnt(0) lgkmcnt(0)")
    A("s_memrealtime s[24:25]")
    A("s_memtime s[26:27]")
    A("s_waitcnt lgkmcnt(0)")
    A(f"s_mul_i32 s7, s2, {nwaves}\ns_add_u32 s7, s7, s6\ns_lshl_b32 s7, s7, 5")
    A(f"s_add_u32 s7, s7, {0x8000000 + idx*0x10000}")
    A("s_add_u32 s8, s4, s7\ns_addc_u32 s9, s5, 0")
    for i in range(8):
        A(f"v_mov_b32 v{4+i}, s{20+i}")
    A("v_mov_b32 v3, 0")
    A("global_store_dwordx4 v3, v[4:7], s[8:9]")
    A("global_store_dwordx4 v3, v[8:11], s[8:9] offset:16")
    A("s_waitcnt vmcnt(0)")
    A(f"L_end{idx}:\ns_endpgm")
    nv = RB + D*P*4
    acc = (nv+3)//4*4
    return "\n".join(L), KD.format(name=name, nv=acc+16*P, acc=acc)

def gen(fn, shifts, **kw):
    nw = kw.get("nwaves", 4)
    hdr = "; @launch kernel=delay_kernel grid=(256,1,1) block=(64,1,1) lds=0\n"
    for i, s in enumerate(shifts):
        hdr += f"; @launch kernel=s{i}_kernel grid=(256,1,1) block=({nw*64},1,1) lds=81920\n"
    txt = '.amdgcn_target "amdgcn-amd-amdhsa--gfx950"\n.text\n' + delay_kernel()
    kds = KD.format(name="delay_kernel", nv=8, acc=8)
    for i, s in enumerate(shifts):
        t, kd = stream_kernel(f"s{i}_kernel", i, s, **kw)
        txt += t + "\n"
        kds += ".p2align 6\n" + kd
    open(fn, "w").write(hdr + txt + '.section .rodata,"a"\n.p2align 6\n' + kds)

if __name__ == "__main__":
    sh = [0,0,1,2,3,4,4,5]
    gen("s2_d6_nomfma.s", sh, D=6, mfma=False, ds=False)
    gen("s2_d12_nomfma.s", sh, D=12, mfma=False, ds=False)
    gen("s2_d6.s", sh, D=6)
    gen("s2_d12.s", sh, D=12)
```

```python
from gen_stream2 import KD, delay_kernel
import gen_lat
def k(name, idx, mode, mf=True):
    L = []; A = L.append
    A(f".globl {name}\n.p2align 8\n.type {name},@function\n{name}:")
    A(f"s_cmp_ge_u32 s2, 256\ns_cbranch_scc1 L_end{idx}")
    A("s_load_dwordx2 s[4:5], s[0:1], 64")
    A("v_lshrrev_b32 v1, 6, v0\ns_nop 0\nv_readfirstlane_b32 s6, v1\nv_and_b32 v2, 63, v0\nv_lshlrev_b32 v2, 4, v2")
    A("s_lshr_b32 s8, s2, 5\ns_lshl_b32 s8, s8, 2\ns_add_u32 s8, s8, s6")
    A("s_mul_i32 s9, s8, 43\ns_lshr_b32 s9, s9, 7\ns_mul_i32 s10, s9, 3\ns_sub_u32 s10, s8, s10")
    A(f"s_mul_i32 s10, s10, {41*16384}\ns_lshl_b32 s8, s9, 21\ns_add_u32 s8, s8, s10")
    A("s_waitcnt lgkmcnt(0)")
    A("s_lshl_b32 s9, s9, 2\ns_add_u32 s9, s9, 0x7000000\ns_load_dword s11, s[4:5], s9")
    A("s_add_u32 s12, s4, s8\ns_addc_u32 s13, s5, 0\ns_and_b32 s13, s13, 0xffff")
    A(f"s_mov_b32 s14, {41*16384}\ns_mov_b32 s15, 0x20000")
    A("s_getreg_b32 s18, hwreg(HW_REG_XCC_ID, 2, 1)\ns_waitcnt lgkmcnt(0)\ns_xor_b32 s11, s11, s18")
    if mode == "far": A("s_xor_b32 s11, s11, 1")
    if mode == "lin": A("s_mov_b32 s11, 0")
    A("s_lshl_b32 s16, s11, 13")
    for i in range(112,128): A(f"v_mov_b32 v{i}, 0")
    A("s_barrier")
    A("s_memrealtime s[20:21]\ns_memtime s[22:23]\ns_waitcnt lgkmcnt(0)")
    def load(i):
        if i >= 324: return
        if i % 4 == 0 and i: A(f"s_add_u32 s16, s16, {4096 if (i % 8 == 4 or mode == 'lin') else 12288}")
        r = 40 + (i % 18)*4
        A(f"buffer_load_dwordx4 v[{r}:{r+3}], v2, s[12:15], s16 offen offset:{(i%4)*1024} sc1")
    for i in range(18): load(i)
    for i in range(324):
        if i % 2 == 0: A(f"s_waitcnt vmcnt({min(16, 322-i)})")
        r = 40 + (i % 18)*4
        if mf:
            for q in range(4):
                A(f"v_mfma_f32_16x16x32_bf16 v[{112+4*q}:{115+4*q}], v[{r}:{r+3}], v[{r}:{r+3}], v[{112+4*q}:{115+4*q}]")
        load(i+18)
    A("s_waitcnt vmcnt(0) lgkmcnt(0)")
    A("s_memrealtime s[24:25]\ns_memtime s[26:27]\ns_waitcnt lgkmcnt(0)")
    A(f"s_mul_i32 s7, s2, 4\ns_add_u32 s7, s7, s6\ns_lshl_b32 s7, s7, 5")
    A(f"s_add_u32 s7, s7, {0x8000000 + idx*0x10000}")
    A("s_add_u32 s8, s4, s7\ns_addc_u32 s9, s5, 0")
    for i in range(8): A(f"v_mov_b32 v{4+i}, s{20+i}")
    A("v_mov_b32 v3, 0\nglobal_store_dwordx4 v3, v[4:7], s[8:9]\nglobal_store_dwordx4 v3, v[8:11], s[8:9] offset:16\ns_waitcnt vmcnt(0)")
    A(f"L_end{idx}:\ns_endpgm")
    return "\n".join(L), KD.format(name=name, nv=128, acc=128)
cfgs = [dict(mode="near", mf=False), dict(mode="lin", mf=False), dict(mode="near", mf=False), dict(mode="far", mf=False), dict(mode="lin"), dict(mode="near"), dict(mode="far"), dict(mode="lin"), dict(mode="near")]
hdr = "; @launch kernel=delay_kernel grid=(256,1,1) block=(64,1,1) lds=0\n"
for i, c in enumerate(cfgs):
    hdr += f"; @launch kernel=s{i}_kernel grid=(256,1,1) block=(256,1,1) lds=81920\n"
txt = '.amdgcn_target "amdgcn-amd-amdhsa--gfx950"\n.text\n' + delay_kernel()
kds = KD.format(name="delay_kernel", nv=8, acc=8)
for i, c in enumerate(cfgs):
    t, kd = k(f"s{i}_kernel", i, **c)
    txt += t + "\n"; kds += ".p2align 6\n" + kd
open("numa.s", "w").write(hdr + txt + '.section .rodata,"a"\n.p2align 6\n' + kds)
```
